```python
import torch

def _softmax(x, axis=-1):
    return torch.softmax(x, dim=axis)
def _gelu(x):
    return torch.nn.functional.gelu(x, approximate="tanh")
def _silu(x):
    return torch.nn.functional.silu(x)
def _sigmoid(x):
    return torch.sigmoid(x)
def _layernorm(x, axis=-1, eps=1e-5):
    m = x.mean(dim=axis, keepdim=True)
    v = x.var(dim=axis, keepdim=True, unbiased=False)
    return (x - m) / torch.sqrt(v + eps)
def _scatter_add(tgt, idx, src, axis=0):
    return tgt.clone().index_add_(axis, idx, src)
def _segment_sum(src, seg, n):
    out = torch.zeros((n,) + src.shape[1:], dtype=src.dtype)
    return out.index_add_(0, seg, src)
def _pad(x, pw):
    flat = tuple(v for pair in reversed(pw) for v in pair)
    return torch.nn.functional.pad(x, flat)

kernel_name = 'gated_mix__sliding_local_dilated__mixer_token_mlp__prompt'

def setup_inputs():

    _w = (lambda a: (lambda t: t.to(torch.bfloat16) if t.is_floating_point() else t)(torch.as_tensor(a)))
    def _A_setup():
        B, S, D = 1, 2048, 1024
        return {
            "x": _w((lambda *s: torch.randn(*s, dtype=torch.bfloat16) * 0.05)(B, S, D)),
            "wqkv": _w((lambda *s: torch.randn(*s, dtype=torch.bfloat16) * 0.8)(D, 3 * D)),
            "wo": _w((lambda *s: torch.randn(*s, dtype=torch.bfloat16) * 0.05)(D, D)),
        }
    _A_in = _A_setup()

    def _B_setup():
        B, S, D, F = 1, 2048, 1024, 3584
        return {
            "x": _w((lambda *s: torch.randn(*s, dtype=torch.bfloat16) * 0.05)(B, S, D)),
            "w1": _w((lambda *s: torch.randn(*s, dtype=torch.bfloat16) * 3.2)(S, F) * (S ** -0.5)),
            "b1": _w((lambda *s: torch.randn(*s, dtype=torch.bfloat16) * 3.2)(F) * 0.02),
            "w2": _w((lambda *s: torch.randn(*s, dtype=torch.bfloat16) * 0.2)(F, S) * (F ** -0.5)),
            "b2": _w((lambda *s: torch.randn(*s, dtype=torch.bfloat16) * 0.2)(S) * 0.02),
        }
    _B_in = _B_setup()

    return {
        "A_x": _A_in["x"],
        "A_wqkv": _A_in["wqkv"],
        "A_wo": _A_in["wo"],
        "B_x": _B_in["x"],
        "B_w1": _B_in["w1"],
        "B_b1": _B_in["b1"],
        "B_w2": _B_in["w2"],
        "B_b2": _B_in["b2"],
        "gate_w": _w((lambda *s: torch.randn(*s, dtype=torch.bfloat16) * 0.05)(1024) * 16.0),
    }

def reference(A_x, A_wqkv, A_wo, B_x, B_w1, B_b1, B_w2, B_b2, gate_w):
    def _A_ref(x, wqkv, wo):
        B, S, D = x.shape
        H = 32; Dh = D // H
        W, dil = 8, 2
        qkv = (lambda x, *d: x.permute(*d))((x @ wqkv).reshape(B, S, 3, H, Dh), 2, 0, 3, 1, 4)
        q, k, v = qkv[0], qkv[1], qkv[2]
        scale = Dh ** -0.5
        pos = torch.arange(S)
        off = torch.arange(W) * dil
        idx = pos[:, None] - off[None, :]
        mask = idx >= 0
        idx_c = torch.where(mask, idx, 0).reshape(-1)
        kg = k[:, :, idx_c, :].reshape(B, H, S, W, Dh)
        vg = v[:, :, idx_c, :].reshape(B, H, S, W, Dh)
        logits = torch.einsum("bhsd,bhswd->bhsw", q, kg) * scale
        logits = torch.where(mask[None, None, :, :], logits, -1e9)
        attn = _softmax(logits, axis=-1)
        o = torch.einsum("bhsw,bhswd->bhsd", attn, vg)
        return (lambda x, *d: x.permute(*d))(o, 0, 2, 1, 3).reshape(B, S, D) @ wo

    def _B_ref(x, w1, b1, w2, b2):
        B, S, D = x.shape
        h = _layernorm(x, axis=-1)
        u = torch.einsum("bsd,sf->bdf", h, w1) + b1
        u = _gelu(u)
        y = torch.einsum("bdf,fs->bds", u, w2) + b2
        return (lambda x, *d: x.permute(*d))(y, 0, 2, 1)

    x = A_x
    g = _sigmoid((x * gate_w).sum(-1, keepdims=True))
    a = _A_ref(x, A_wqkv, A_wo)
    b = _B_ref(x, B_w1, B_b1, B_w2, B_b2)
    return g * a + (1 - g) * b
```

```python
class Asm:
    def __init__(self):
        self.lines = []
        self._lab = 0
    def __call__(self, s):
        for ln in s.strip("\n").split("\n"):
            self.lines.append("    " + ln.strip())
    def label(self, name):
        self.lines.append(name + ":")
    def raw(self, s):
        self.lines.append(s)
    def comment(self, s):
        self.lines.append("    ; " + s)
    def newlabel(self, pfx="L"):
        self._lab += 1
        return "%s_%d" % (pfx, self._lab)
    def text(self):
        return "\n".join(self.lines) + "\n"

def vr(b, n=1):
    return "v%d" % b if n == 1 else "v[%d:%d]" % (b, b + n - 1)
def sr(b, n=1):
    return "s%d" % b if n == 1 else "s[%d:%d]" % (b, b + n - 1)
def ar(b, n=1):
    return "a%d" % b if n == 1 else "a[%d:%d]" % (b, b + n - 1)

def kernel_header(a, name):
    a.raw(".globl %s" % name)
    a.raw(".p2align 8")
    a.raw(".type %s,@function" % name)
    a.label(name)

def kernel_desc(name, nvgpr, nsgpr=102, accum=None, wgy=False):
    if accum is None:
        accum = (nvgpr + 3) // 4 * 4
        if accum > 256: accum = 256
    s = [".p2align 6",
         ".amdhsa_kernel %s" % name,
         "  .amdhsa_next_free_vgpr %d" % nvgpr,
         "  .amdhsa_next_free_sgpr %d" % nsgpr,
         "  .amdhsa_accum_offset %d" % accum,
         "  .amdhsa_group_segment_fixed_size 0",
         "  .amdhsa_kernarg_size 96",
         "  .amdhsa_user_sgpr_count 2",
         "  .amdhsa_user_sgpr_kernarg_segment_ptr 1",
         "  .amdhsa_system_sgpr_workgroup_id_x 1"]
    if wgy:
        s.append("  .amdhsa_system_sgpr_workgroup_id_y 1")
    s.append(".end_amdhsa_kernel")
    return "\n".join(s) + "\n"

def make_srd(a, dst, src, nbytes):
    a("s_mov_b32 s%d, s%d" % (dst, src))
    a("s_and_b32 s%d, s%d, 0xffff" % (dst + 1, src + 1))
    a("s_mov_b32 s%d, 0x%x" % (dst + 2, nbytes))
    a("s_mov_b32 s%d, 0x00020000" % (dst + 3))
```

```python
import struct, math
from gemmlib import *

def f32hex(x): return "0x%08x" % struct.unpack("<I", struct.pack("<f", x))[0]

MB = 1 << 20
WS_HT, WS_XO, WS_U, WS_O, WS_G, WS_FLAG, WS_P, WS_T = 0, 4 * MB, 8 * MB, 16 * MB, 20 * MB, 21 * MB, 22 * MB, 48 * MB

def ws_srd(a, dst, wsreg, off, nbytes):
    if off:
        a("s_add_u32 s%d, s%d, 0x%x" % (dst, wsreg, off))
        a("s_addc_u32 s%d, s%d, 0" % (dst + 1, wsreg + 1))
        a("s_and_b32 s%d, s%d, 0xffff" % (dst + 1, dst + 1))
    else:
        a("s_mov_b32 s%d, s%d" % (dst, wsreg))
        a("s_and_b32 s%d, s%d, 0xffff" % (dst + 1, wsreg + 1))
    a("s_mov_b32 s%d, 0x%x" % (dst + 2, nbytes))
    a("s_mov_b32 s%d, 0x00020000" % (dst + 3))

def flat(L):
    o = []
    for x in L:
        if isinstance(x, (list, tuple)): o.extend(flat(x))
        else: o.append(x)
    return o

def emit_seq(a, keys, period, emit_fn, ctr, name):
    t = 0
    N = len(keys)
    while t < N:
        n = 1
        if t + period <= N:
            while t + (n + 1) * period <= N and keys[t + n * period:t + (n + 1) * period] == keys[t:t + period]:
                n += 1
        if n >= 2 and t + period <= N:
            lab = a.newlabel(name)
            a("s_mov_b32 s%d, %d" % (ctr, n))
            a.label(lab)
            for k in keys[t:t + period]: emit_fn(k)
            a("s_sub_u32 s%d, s%d, 1" % (ctr, ctr))
            a("s_cmp_lg_u32 s%d, 0" % ctr)
            a("s_cbranch_scc1 %s" % lab)
            t += n * period
        else:
            emit_fn(keys[t]); t += 1

def wave_allreduce(a, R, op, T):
    n = len(R)
    pad = {1: "s_nop 1", 2: "s_nop 0"}.get(n)
    for ctrl in ("quad_perm:[1,0,3,2]", "quad_perm:[2,3,0,1]", "row_half_mirror", "row_mirror"):
        if pad: a(pad)
        for r in R:
            a("%s_dpp v%d, v%d, v%d %s row_mask:0xf bank_mask:0xf" % (op, r, r, r, ctrl))
    for sw in ("v_permlane16_swap_b32", "v_permlane32_swap_b32"):
        for r, t in zip(R, T): a("v_mov_b32 v%d, v%d" % (t, r))
        a("s_nop 1")
        for r, t in zip(R, T): a("%s v%d, v%d" % (sw, r, t))
        for r, t in zip(R, T): a("%s v%d, v%d, v%d" % (op, r, r, t))

def stamp(a, sreg):
    a("s_memrealtime s[%d:%d]" % (sreg, sreg + 1))
```

```python
from asmlib import *

def interleave(mfmas, fillers, start=0, span=None, per_gap_max=2):
    n = len(mfmas)
    if span is None: span = n - start
    slots = [[] for _ in range(n)]
    nf = len(fillers)
    for i, f in enumerate(fillers):
        g = start + (i * span) // max(nf, 1)
        g = min(g, n - 1)
        slots[g].append(f)
    out = []
    for i, m in enumerate(mfmas):
        out.append(m)
        for f in slots[i]:
            if isinstance(f, (list, tuple)): out.extend(f)
            else: out.append(f)
    return out

def conflicts_b64(addrs):
    worst = 1
    for grp in (range(0, 32), range(32, 64)):
        banks = {}
        for l in grp:
            for d in range(2):
                a = addrs[l] + 4 * d
                banks.setdefault((a // 4) % 64, set()).add(a // 4)
        worst = max(worst, max(len(s) for s in banks.values()))
    return worst
B128_GROUPS = [list(range(0,4))+list(range(12,16))+list(range(20,28)),
               list(range(4,12))+list(range(16,20))+list(range(28,32)),
               list(range(32,36))+list(range(44,48))+list(range(52,60)),
               list(range(36,44))+list(range(48,52))+list(range(60,64))]
def conflicts_b128(addrs):
    worst = 1
    for grp in B128_GROUPS:
        banks = {}
        for l in grp:
            for d in range(4):
                a = addrs[l] + 4 * d
                banks.setdefault((a // 4) % 64, set()).add(a // 4)
        worst = max(worst, max(len(s) for s in banks.values()))
    return worst

def magic_div(d, qmax):
    for sh in range(8, 24):
        M = (1 << sh) // d + 1
        if all(((q * M) >> sh) == q // d for q in range(qmax)) and qmax * M < (1 << 32):
            return M, sh
    raise ValueError
```

```python
from common import *
from k_main1 import emit_producer

F_SLOT = 16384
def gen_final(a, cfg):
    name = "final_kernel"
    NS = cfg.get("f_ns", 8)
    XS = cfg.get("f_split", 48)
    kernel_header(a, name)
    a("s_cmp_ge_u32 s2, 256")
    a("s_cbranch_scc1 L_f_end")
    a("s_load_dwordx2 s[4:5], s[0:1], 16")
    a("s_load_dwordx4 s[40:43], s[0:1], 48")
    a("s_load_dwordx2 s[6:7], s[0:1], 72")
    a("s_load_dwordx2 s[34:35], s[0:1], 88")
    a("v_lshrrev_b32 v1, 6, v0")
    a("v_and_b32 v2, 63, v0")
    a("v_lshrrev_b32 v3, 4, v2")
    a("v_and_b32 v4, 15, v2")
    a("v_readfirstlane_b32 s31, v1")
    a("s_and_b32 s3, s2, 7")
    a("s_lshr_b32 s30, s2, 3")
    a("s_lshr_b32 s48, s3, 2")
    a("s_and_b32 s32, s3, 1")
    a("s_lshl_b32 s32, s32, 3")
    a("s_and_b32 s38, s30, 7")
    a("s_add_u32 s32, s32, s38")
    a("s_lshr_b32 s33, s3, 1")
    a("s_and_b32 s33, s33, 1")
    a("s_lshl_b32 s33, s33, 2")
    a("s_lshr_b32 s38, s30, 3")
    a("s_add_u32 s33, s33, s38")
    a("s_lshl_b32 s49, s32, 3")
    a("s_add_u32 s49, s49, s33")
    a("s_waitcnt lgkmcnt(0)")
    make_srd(a, 8, 4, 2 * MB)
    ws_srd(a, 12, 34, WS_O, 4 * MB)
    make_srd(a, 16, 40, 3584 * 4096)
    ws_srd(a, 20, 34, WS_U, 448 * 16384)
    a("s_cmp_lt_u32 s31, 4")
    a("s_cbranch_scc1 L_f_cons")
    a("s_sub_u32 s39, s31, 4")
    a("v_lshlrev_b32 v5, 4, v2")
    a("s_lshl_b32 s38, s39, 15")
    a("s_lshl_b32 s44, s32, 11")
    a("s_add_u32 s38, s38, s44")
    a("v_add_u32 v8, s38, v5")
    a("s_lshl_b32 s38, s39, 14")
    a("s_lshl_b32 s44, s33, 11")
    a("s_add_u32 s38, s38, s44")
    a("v_add_u32 v9, s38, v5")
    a("s_and_b32 s38, s39, 1")
    a("s_lshl_b32 s38, s38, 2")
    a("v_or_b32 v6, s38, v3")
    a("v_lshlrev_b32 v6, 1, v6")
    a("v_xor_b32 v6, v6, v4")
    a("v_lshlrev_b32 v6, 4, v6")
    a("s_lshl_b32 s38, s39, 3")
    a("v_add_u32 v7, s38, v3")
    a("s_lshl_b32 s44, s33, 8")
    a("v_lshl_add_u32 v10, v7, 11, v6")
    a("v_add_u32 v10, s44, v10")
    a("v_add_u32 v11, %d, v10" % (4 * 2048 - 1024))
    a("s_lshl_b32 s44, s32, 8")
    a("v_lshl_add_u32 v12, v7, 12, v6")
    a("v_add_u32 v12, s44, v12")
    a("v_add_u32 v13, %d, v12" % (4 * 4096 - 1024))
    a("s_lshl_b32 s44, s39, 11")
    a("s_mov_b32 s24, 0")
    a("s_mov_b32 s25, 0")
    a("s_mul_i32 s26, s48, %d" % (XS * 4 * 16384))
    a("s_mul_i32 s27, s48, %d" % (XS * 32 * 4096))
    def dma(slot, kd):
        b = slot * F_SLOT
        if kd == 0:
            return ["s_add_u32 m0, s44, %d" % b, "s_nop 0",
                    "buffer_load_dwordx4 v8, s[12:15], s24 offen lds",
                    "buffer_load_dwordx4 v8, s[12:15], s24 offen offset:1024 lds",
                    "s_add_u32 m0, s44, %d" % (b + 8192), "s_add_u32 s24, s24, 131072",
                    "buffer_load_dwordx4 v10, s[8:11], s25 offen lds",
                    "buffer_load_dwordx4 v11, s[8:11], s25 offen offset:1024 lds",
                    "s_add_u32 s25, s25, %d" % (32 * 2048)]
        return ["s_add_u32 m0, s44, %d" % b, "s_nop 0",
                "buffer_load_dwordx4 v9, s[20:23], s26 offen lds",
                "buffer_load_dwordx4 v9, s[20:23], s26 offen offset:1024 lds",
                "s_add_u32 m0, s44, %d" % (b + 8192), "s_add_u32 s26, s26, 65536",
                "buffer_load_dwordx4 v12, s[16:19], s27 offen lds",
                "buffer_load_dwordx4 v13, s[16:19], s27 offen offset:1024 lds",
                "s_add_u32 s27, s27, %d" % (32 * 4096)]
    a("s_cmp_eq_u32 s48, 0")
    a("s_cbranch_scc0 L_f_p1")
    emit_producer(a, 32 + XS, NS, 4, dma, None, "L_fp0", kind=lambda t: 0 if t < 32 else 1)
    a("s_endpgm")
    a.label("L_f_p1")
    emit_producer(a, 112 - XS, NS, 4, dma, None, "L_fp1", kind=lambda t: 1)
    a("s_endpgm")
    a.label("L_f_cons")
    ACA, ACB = 128, 192
    FR = [8, 40]; FT = [24, 56]
    NG = (NS + 3) // 4
    VR = [72, 72 + NG]
    VT = [72 + 2 * NG, 72 + 2 * NG + 4 * NG]
    VG = 72 + 10 * NG
    assert VG + 12 + 4 <= 128
    a("s_and_b32 s46, s31, 1")
    a("s_lshr_b32 s47, s31, 1")
    ws_srd(a, 24, 34, WS_G, 2 * MB)
    make_srd(a, 52, 42, 4096)
    make_srd(a, 56, 6, 4 * MB)
    ws_srd(a, 60, 34, WS_P, 16 * MB)
    a("s_lshl_b32 s38, s32, 7")
    a("s_lshl_b32 s39, s47, 6")
    a("s_add_u32 s38, s38, s39")
    a("v_add_u32 v5, s38, v4")
    a("v_lshlrev_b32 v6, 3, v5")
    a("v_lshlrev_b32 v7, 1, v5")
    for sj in range(4):
        a("buffer_load_dwordx2 v[%d:%d], v6, s[24:27], 0 offen offset:%d" % (VG + 2 * sj, VG + 2 * sj + 1, sj * 128))
    for sj in range(4):
        a("buffer_load_ushort v%d, v7, s[52:55], 0 offen offset:%d" % (VG + 8 + sj, sj * 32))
    a("v_lshlrev_b32 v1, 11, v5")
    a("v_lshlrev_b32 v5, 11, v3")
    a("v_lshl_add_u32 v5, v4, 4, v5")
    for kd, sreg in ((0, 47), (1, 46)):
        a("s_lshl_b32 s38, s%d, 10" % sreg)
        a("v_add_u32 v6, s38, v5")
        for gI in range(NG): a("v_add_u32 v%d, %d, v6" % (VR[kd] + gI, gI * 4 * F_SLOT))
    a("v_lshrrev_b32 v5, 2, v4")
    a("v_lshl_add_u32 v6, v3, 3, v5")
    a("v_and_b32 v7, 1, v3")
    a("v_lshl_add_u32 v5, v7, 2, v5")
    a("v_and_b32 v7, 3, v4")
    a("v_lshlrev_b32 v7, 3, v7")
    a("v_lshl_add_u32 v6, v6, 8, v7")
    a("v_add_u32 v6, 8192, v6")
    for kd, sreg in ((0, 46), (1, 47)):
        for n in range(4):
            a("s_lshl_b32 s38, s%d, 2" % sreg)
            a("s_add_u32 s38, s38, %d" % n)
            a("v_xor_b32 v7, s38, v5")
            a("v_lshl_add_u32 v7, v7, 5, v6")
            for gI in range(NG): a("v_add_u32 v%d, %d, v7" % (VT[kd] + 4 * gI + n, gI * 4 * F_SLOT))
    for r in range(128): a("v_mov_b32 v%d, 0" % (ACA + r))
    def reads(fs, slot, kd):
        gI, so = slot // 4, (slot % 4) * F_SLOT
        rr = lambda j: "ds_read_b128 v[%d:%d], v%d offset:%d" % (FR[fs] + 4 * j, FR[fs] + 4 * j + 3, VR[kd] + gI, so + j * 256)
        rt = lambda n: ["ds_read_b64_tr_b16 v[%d:%d], v%d offset:%d" % (FT[fs] + 4 * n + 2 * hh, FT[fs] + 4 * n + 2 * hh + 1,
                        VT[kd] + 4 * gI + n, so + hh * 1024) for hh in range(2)]
        L = []
        for j in range(4): L += [rr(j)] + rt(j)
        return L
    def mfmas(fs, kd):
        L = []
        for ii in range(4):
            for jj in range(4):
                c = (ACA if kd == 0 else ACB) + (ii * 4 + jj) * 4
                A = (FT if kd == 0 else FR)[fs] + 4 * ii
                B = (FR if kd == 0 else FT)[fs] + 4 * jj
                L.append("v_mfma_f32_16x16x32_bf16 v[%d:%d], v[%d:%d], v[%d:%d], v[%d:%d]" % (c, c + 3, A, A + 3, B, B + 3, c, c + 3))
        return L
    RSPAN = cfg.get("f_rspan", 12)
    def loop(T, kind, nm):
        a("s_barrier")
        for x in reads(0, 0, kind(0)): a(x)
        keys = [(t % NS, t % 2, kind(t), kind(t + 1) if t + 1 < T else None) for t in range(T)]
        def fn(k):
            slot, fs, kd, kn = k
            a("s_waitcnt lgkmcnt(0)")
            if kn is None:
                for x in mfmas(fs, kd): a(x)
            else:
                a("s_barrier")
                for x in interleave(mfmas(fs, kd), reads(1 - fs, (slot + 1) % NS, kn), 0, RSPAN): a(x)
        emit_seq(a, keys, NS if NS % 2 == 0 else 2 * NS, fn, 30, nm)
    a("s_lshl_b32 s50, s49, 8")
    a("s_add_u32 s50, s50, 0x%x" % (WS_FLAG - WS_G))
    a("v_mov_b32 v5, 0")
    a("v_mov_b32 v6, 1")
    a("s_setprio 1")
    a("s_cmp_eq_u32 s48, 0")
    a("s_cbranch_scc0 L_f_c1")
    loop(32 + XS, lambda t: 0 if t < 32 else 1, "L_fc0")
    a("s_branch L_f_exch")
    a.label("L_f_c1")
    loop(112 - XS, lambda t: 1, "L_fc1")
    a.label("L_f_exch")
    a("s_setprio 0")
    a("s_lshl_b32 s38, s31, 4")
    a("s_add_u32 s50, s50, s38")
    a("v_cmp_eq_u32 vcc, 0, v2")
    a("s_and_saveexec_b64 s[64:65], vcc")
    a("buffer_atomic_add v6, v5, s[24:27], s50 offen sc0")
    a("s_mov_b64 exec, s[64:65]")
    a("s_lshl_b32 s51, s49, 17")
    a("s_lshl_b32 s38, s31, 14")
    a("s_add_u32 s51, s51, s38")
    a("v_lshlrev_b32 v7, 4, v2")
    a("s_waitcnt vmcnt(0)")
    a("v_readfirstlane_b32 s38, v6")
    a("s_nop 3")
    a("s_cmp_eq_u32 s38, 0")
    a("s_cbranch_scc0 L_f_second")
    for q in range(16):
        if q % 4 == 0: a("s_add_u32 s39, s51, %d" % (q * 1024))
        a("buffer_store_dwordx4 v[%d:%d], v7, s[60:63], s39 offen offset:%d sc0 sc1" % (ACB + 4 * q, ACB + 4 * q + 3, (q % 4) * 1024))
    a("s_cmp_eq_u32 s48, 0")
    a("s_cbranch_scc0 L_f_pub_done")
    for q in range(16):
        if q % 4 == 0: a("s_add_u32 s39, s51, %d" % (65536 + q * 1024))
        a("buffer_store_dwordx4 v[%d:%d], v7, s[60:63], s39 offen offset:%d sc0 sc1" % (ACA + 4 * q, ACA + 4 * q + 3, (q % 4) * 1024))
    a.label("L_f_pub_done")
    a("v_mov_b32 v6, 0x100")
    a("s_waitcnt vmcnt(0)")
    a("v_cmp_eq_u32 vcc, 0, v2")
    a("s_and_saveexec_b64 s[64:65], vcc")
    a("buffer_atomic_add v6, v5, s[24:27], s50 offen")
    a("s_endpgm")
    a.label("L_f_second")
    a.label("L_f_poll")
    a("buffer_load_dword v6, v5, s[24:27], s50 offen sc0 sc1")
    a("s_waitcnt vmcnt(0)")
    a("v_readfirstlane_b32 s38, v6")
    a("s_nop 3")
    a("s_and_b32 s38, s38, 0x100")
    a("s_cmp_lg_u32 s38, 0")
    a("s_cbranch_scc1 L_f_ready")
    a("s_sleep 1")
    a("s_branch L_f_poll")
    a.label("L_f_ready")
    for q in range(16):
        if q % 4 == 0: a("s_add_u32 s39, s51, %d" % (q * 1024))
        a("buffer_load_dwordx4 v[%d:%d], v7, s[60:63], s39 offen offset:%d sc0 sc1" % (8 + 4 * q, 8 + 4 * q + 3, (q % 4) * 1024))
    a("s_cmp_eq_u32 s48, 0")
    a("s_cbranch_scc1 L_f_noa")
    for q in range(16):
        if q % 4 == 0: a("s_add_u32 s39, s51, %d" % (65536 + q * 1024))
        a("buffer_load_dwordx4 v[%d:%d], v7, s[60:63], s39 offen offset:%d sc0 sc1" % (ACA + 4 * q, ACA + 4 * q + 3, (q % 4) * 1024))
    a("s_waitcnt vmcnt(0)")
    a.label("L_f_noa")
    a("s_mov_b32 s66, 0xffff0000")
    for sj in range(4): a("v_lshlrev_b32 v%d, 16, v%d" % (VG + 8 + sj, VG + 8 + sj))
    a("v_and_b32 v5, 1, v3")
    a("v_lshrrev_b32 v6, 1, v3")
    a("v_lshlrev_b32 v6, 4, v6")
    a("v_lshl_add_u32 v6, v5, 5, v6")
    a("v_add_u32 v1, v1, v6")
    a("s_lshl_b32 s38, s33, 8")
    a("s_lshl_b32 s39, s46, 7")
    a("s_add_u32 s67, s38, s39")
    X = VG + 12
    O = 72
    def comb(ii, jj, o, waitn):
        q = ii * 4 + jj
        ca, cb, pb = ACA + 4 * q, ACB + 4 * q, 8 + 4 * q
        G, OM, B2 = VG + 2 * jj, VG + 2 * jj + 1, VG + 8 + jj
        a("s_waitcnt vmcnt(%d)" % waitn) if waitn is not None else None
        for h in (0, 2): a("v_pk_add_f32 v[%d:%d], v[%d:%d], v[%d:%d]" % (cb + h, cb + h + 1, cb + h, cb + h + 1, pb + h, pb + h + 1))
        a("v_cvt_pk_bf16_f32 v%d, v%d, v%d" % (o, cb, cb + 1))
        a("v_cvt_pk_bf16_f32 v%d, v%d, v%d" % (o + 1, cb + 2, cb + 3))
        def unpack(dst):
            a("v_lshlrev_b32 v%d, 16, v%d" % (dst, o))
            a("v_and_b32 v%d, s66, v%d" % (dst + 1, o))
            a("v_lshlrev_b32 v%d, 16, v%d" % (dst + 2, o + 1))
            a("v_and_b32 v%d, s66, v%d" % (dst + 3, o + 1))
        def pack(src):
            a("v_cvt_pk_bf16_f32 v%d, v%d, v%d" % (o, src, src + 1))
            a("v_cvt_pk_bf16_f32 v%d, v%d, v%d" % (o + 1, src + 2, src + 3))
        unpack(cb)
        for e in range(4): a("v_add_f32 v%d, v%d, v%d" % (cb + e, cb + e, B2))
        pack(cb); unpack(cb)
        for e in range(4): a("v_mul_f32 v%d, v%d, v%d" % (cb + e, cb + e, OM))
        pack(cb); unpack(cb)
        pack(ca); unpack(ca)
        for e in range(4): a("v_mul_f32 v%d, v%d, v%d" % (ca + e, ca + e, G))
        pack(ca); unpack(ca)
        for h in (0, 2): a("v_pk_add_f32 v[%d:%d], v[%d:%d], v[%d:%d]" % (cb + h, cb + h + 1, cb + h, cb + h + 1, ca + h, ca + h + 1))
        pack(cb)
    a("s_waitcnt vmcnt(0)")
    n = 0
    for ip in range(2):
        for jj in range(4):
            o = O + 4 * (n % 2); n += 1
            comb(2 * ip, jj, o, None)
            comb(2 * ip + 1, jj, o + 2, None)
            a("s_nop 1")
            a("v_permlane16_swap_b32 v%d, v%d" % (o, o + 2))
            a("v_permlane16_swap_b32 v%d, v%d" % (o + 1, o + 3))
            a("s_add_u32 s38, s67, %d" % (jj * 16 * 2048))
            a("buffer_store_dwordx4 v[%d:%d], v1, s[56:59], s38 offen offset:%d" % (o, o + 3, ip * 64))
    a.label("L_f_end")
    a("s_endpgm")
    return dict(name=name, grid=256, block=512, lds=NS * F_SLOT, vgpr=256, sgpr=80)
```

```python
from common import *

def gen_ln(a, cfg):
    name = "ln_kernel"
    kernel_header(a, name)
    a("s_cmp_ge_u32 s2, 256")
    a("s_cbranch_scc1 L_ln_end")
    a("s_load_dwordx2 s[4:5], s[0:1], 0")
    a("s_load_dwordx2 s[6:7], s[0:1], 64")
    a("s_load_dwordx2 s[34:35], s[0:1], 88")
    a("v_lshrrev_b32 v1, 6, v0")
    a("v_and_b32 v2, 63, v0")
    a("v_lshlrev_b32 v3, 4, v2")
    a("v_readfirstlane_b32 s31, v1")
    a("s_lshl_b32 s3, s2, 3")
    a("s_add_u32 s30, s3, s31")
    a("s_lshl_b32 s28, s30, 11")
    a("v_and_b32 v4, 7, v2")
    a("v_lshrrev_b32 v5, 3, v2")
    a("s_lshl_b32 s29, s31, 4")
    a("v_add_u32 v5, s29, v5")
    a("v_add_u32 v4, s3, v4")
    a("v_lshlrev_b32 v6, 11, v4")
    a("v_lshl_add_u32 v6, v5, 4, v6")
    a("v_lshlrev_b32 v7, 15, v5")
    a("v_lshl_add_u32 v7, v4, 4, v7")
    a("s_waitcnt lgkmcnt(0)")
    make_srd(a, 8, 4, 4 * MB)
    make_srd(a, 12, 6, 2048)
    ws_srd(a, 16, 34, 0, 22 * MB)
    a("buffer_load_dwordx4 v[8:11], v3, s[8:11], s28 offen")
    a("buffer_load_dwordx4 v[12:15], v3, s[8:11], s28 offen offset:1024")
    a("buffer_load_dwordx4 v[16:19], v3, s[12:15], 0 offen")
    a("buffer_load_dwordx4 v[20:23], v3, s[12:15], 0 offen offset:1024")
    a("buffer_load_dwordx4 v[24:27], v6, s[8:11], 0 offen")
    a("buffer_load_dwordx4 v[28:31], v6, s[8:11], 0 offen offset:128")
    for x in cfg.get("ln_prefetch", lambda a: None)(a) or []: a(x)
    a("s_mov_b32 s36, 0xffff0000")
    a("s_mov_b32 s37, 0x3f803f80")
    a("v_mov_b32 v64, 0")
    a("v_mov_b32 v65, 0")
    npf = cfg.get("ln_npf", 0)
    a("s_waitcnt vmcnt(%d)" % (4 + npf))
    for k in range(8):
        a("v_lshlrev_b32 v%d, 16, v%d" % (32 + 2 * k, 8 + k))
        a("v_and_b32 v%d, s36, v%d" % (33 + 2 * k, 8 + k))
    for k in range(8):
        a("v_dot2_f32_bf16 v64, v%d, s37, v64" % (8 + k))
    a("s_waitcnt vmcnt(%d)" % (2 + npf))
    for k in range(8):
        a("v_lshlrev_b32 v%d, 16, v%d" % (48 + 2 * k, 16 + k))
        a("v_and_b32 v%d, s36, v%d" % (49 + 2 * k, 16 + k))
    for k in range(8):
        a("v_pk_mul_f32 v[%d:%d], v[%d:%d], v[%d:%d]" % (48 + 2 * k, 49 + 2 * k, 48 + 2 * k, 49 + 2 * k, 32 + 2 * k, 33 + 2 * k))
    for k in range(8):
        a("v_cvt_pk_bf16_f32 v%d, v%d, v%d" % (16 + k, 48 + 2 * k, 49 + 2 * k))
    for k in range(8):
        a("v_dot2_f32_bf16 v65, v%d, s37, v65" % (16 + k))
    a("s_nop 2")
    wave_allreduce(a, [64, 65], "v_add_f32", [66, 67])
    a("s_waitcnt vmcnt(%d)" % npf)
    a("s_mov_b32 s38, 0x%x" % WS_XO)
    a("s_mov_b32 s39, 0x%x" % (WS_XO + 8 * 32768))
    a("buffer_store_dwordx4 v[24:27], v7, s[16:19], s38 offen")
    a("buffer_store_dwordx4 v[28:31], v7, s[16:19], s39 offen")
    a("v_mul_f32 v64, %s, v64" % f32hex(1.0 / 1024))
    a("v_sub_f32 v68, 0, v64")
    a("v_mov_b32 v69, v68")
    a("v_mov_b32 v70, 0")
    a("v_mov_b32 v71, 0")
    for k in range(8):
        a("v_pk_add_f32 v[%d:%d], v[%d:%d], v[68:69]" % (48 + 2 * k, 49 + 2 * k, 32 + 2 * k, 33 + 2 * k))
    for k in range(8):
        a("v_pk_fma_f32 v[70:71], v[%d:%d], v[%d:%d], v[70:71]" % (48 + 2 * k, 49 + 2 * k, 48 + 2 * k, 49 + 2 * k))
    a("v_add_f32 v70, v70, v71")
    wave_allreduce(a, [70], "v_add_f32", [66])
    a("v_cvt_pk_bf16_f32 v64, v64, v65")
    a("v_mul_f32 v70, %s, v70" % f32hex(1.0 / 1024))
    a("v_and_b32 v65, s36, v64")
    a("v_lshlrev_b32 v64, 16, v64")
    a("v_cvt_pk_bf16_f32 v70, v70, v70")
    a("v_mul_f32 v65, %s, v65" % f32hex(-1.4426950408889634))
    a("v_and_b32 v70, s36, v70")
    a("v_exp_f32 v65, v65")
    a("v_add_f32 v70, %s, v70" % f32hex(1e-5))
    a("v_sub_f32 v68, 0, v64")
    a("v_add_f32 v65, 1.0, v65")
    a("v_cvt_pk_bf16_f32 v70, v70, v70")
    a("v_rcp_f32 v65, v65")
    a("v_and_b32 v70, s36, v70")
    a("v_mov_b32 v69, v68")
    a("v_sqrt_f32 v70, v70")
    a("v_cvt_pk_bf16_f32 v65, v65, v65")
    a("v_and_b32 v72, s36, v65")
    a("v_cvt_pk_bf16_f32 v70, v70, v70")
    a("v_sub_f32 v73, 1.0, v72")
    a("v_and_b32 v70, s36, v70")
    a("v_cvt_pk_bf16_f32 v73, v73, v73")
    a("v_rcp_f32 v70, v70")
    a("v_and_b32 v73, s36, v73")
    for k in range(8):
        a("v_pk_add_f32 v[%d:%d], v[%d:%d], v[68:69]" % (48 + 2 * k, 49 + 2 * k, 32 + 2 * k, 33 + 2 * k))
    a("v_mov_b32 v71, v70")
    for k in range(8):
        a("v_cvt_pk_bf16_f32 v%d, v%d, v%d" % (8 + k, 48 + 2 * k, 49 + 2 * k))
    for k in range(8):
        a("v_lshlrev_b32 v%d, 16, v%d" % (48 + 2 * k, 8 + k))
        a("v_and_b32 v%d, s36, v%d" % (49 + 2 * k, 8 + k))
    for k in range(8):
        a("v_pk_mul_f32 v[%d:%d], v[%d:%d], v[70:71]" % (48 + 2 * k, 49 + 2 * k, 48 + 2 * k, 49 + 2 * k))
    for k in range(8):
        a("v_cvt_pk_bf16_f32 v%d, v%d, v%d" % (8 + k, 48 + 2 * k, 49 + 2 * k))
    a("s_mul_i32 s38, s31, 2112")
    a("v_add_u32 v4, s38, v3")
    a("ds_write_b128 v4, v[8:11]")
    a("ds_write_b128 v4, v[12:15] offset:1024")
    a("v_lshrrev_b32 v5, 4, v2")
    a("v_and_b32 v6, 15, v2")
    a("v_lshrrev_b32 v7, 2, v6")
    a("v_mul_u32_u24 v7, 2112, v7")
    a("v_lshl_add_u32 v7, v5, 5, v7")
    a("v_and_b32 v6, 3, v6")
    a("v_lshl_add_u32 v7, v6, 3, v7")
    a("s_lshl_b32 s38, s31, 8")
    a("v_add_u32 v7, s38, v7")
    a("s_lshl_b32 s38, s30, 3")
    a("s_add_u32 s38, s38, 0x%x" % WS_G)
    a("v_mov_b32 v5, 0")
    a("v_cmp_eq_u32 vcc, 0, v2")
    a("s_and_saveexec_b64 s[40:41], vcc")
    a("buffer_store_dwordx2 v[72:73], v5, s[16:19], s38 offen")
    a("s_mov_b64 exec, s[40:41]")
    a("s_waitcnt lgkmcnt(0)")
    a("s_barrier")
    for j in range(2):
        for hh in range(2):
            a("ds_read_b64_tr_b16 v[%d:%d], v7 offset:%d" % (8 + 4 * j + 2 * hh, 9 + 4 * j + 2 * hh, j * 128 + hh * 4 * 2112))
    a("s_lshl_b32 s38, s2, 14")
    a("s_lshl_b32 s39, s31, 11")
    a("s_add_u32 s38, s38, s39")
    a("s_waitcnt lgkmcnt(2)")
    a("buffer_store_dwordx4 v[8:11], v3, s[16:19], s38 offen")
    a("s_waitcnt lgkmcnt(0)")
    a("buffer_store_dwordx4 v[12:15], v3, s[16:19], s38 offen offset:1024")
    a("s_cmp_ge_u32 s2, 128")
    a("s_cbranch_scc1 L_ln_end")
    a("s_cmp_lg_u32 s31, 0")
    a("s_cbranch_scc1 L_ln_end")
    a("s_lshl_b32 s38, s2, 8")
    a("s_add_u32 s38, s38, 0x%x" % WS_FLAG)
    a("v_lshlrev_b32 v4, 2, v2")
    a("buffer_store_dword v5, v4, s[16:19], s38 offen")
    a.label("L_ln_end")
    a("s_endpgm")
    return dict(name=name, grid=256, block=512, lds=8 * 2112, vgpr=80, sgpr=48)
```

```python
from common import *

def emit_producer(a, T, NS, ND, dma, extra, name, ctr=30, kind=lambda t: 0, first_extra=None, tail_fn=None):
    for x in flat(dma(0, kind(0))): a(x)
    for x in flat(dma(1, kind(1))): a(x)
    a("s_waitcnt vmcnt(%d)" % ND)
    a("s_barrier")
    for s in range(2, NS):
        for x in flat(dma(s, kind(s))): a(x)
    if extra:
        for x in flat(extra(0)): a(x)
    keys = []
    for t in range(T - 1):
        allow = max(0, min(t + NS - 1, T - 1) - (t + 1))
        keys.append((t % NS, allow, kind(t + NS) if t + NS < T else None))
    def fn(k):
        slot, allow, kd = k
        a("s_waitcnt vmcnt(%d)" % (ND * allow))
        a("s_barrier")
        if kd is not None:
            for x in flat(dma(slot, kd)): a(x)
        if extra:
            for x in flat(extra((slot + 1) % NS)): a(x)
    emit_seq(a, keys, NS, fn, ctr, name)

W1_NS = 7
W1_SLOT = 8192 + 14336
def w1_path(a, cfg):
    NS, SLOT, T = W1_NS, W1_SLOT, 64
    a("s_lshl_b32 s36, s32, 11")
    a("s_mul_i32 s37, s33, 448")
    a("s_cmp_lt_u32 s31, 4")
    a("s_cbranch_scc1 L_w1_cons")
    a("s_sub_u32 s39, s31, 4")
    a("s_lshl_b32 s38, s39, 14")
    a("s_add_u32 s38, s38, s36")
    a("v_lshlrev_b32 v8, 4, v2")
    a("v_add_u32 v8, s38, v8")
    M, sh = magic_div(28, 256)
    a("s_and_b32 s40, s39, 1")
    a("s_lshl_b32 s40, s40, 1")
    a("s_mul_i32 s41, s39, %d" % (8 * 7168))
    a("s_add_u32 s41, s41, s37")
    for n in range(4):
        a("v_add_u32 v5, %d, v2" % (64 * n))
        a("v_mul_u32_u24 v6, %d, v5" % M)
        a("v_lshrrev_b32 v6, %d, v6" % sh)
        a("v_mul_u32_u24 v7, 28, v6")
        a("v_sub_u32 v5, v5, v7")
        a("v_xor_b32 v5, s40, v5")
        a("v_lshlrev_b32 v5, 4, v5")
        a("v_mul_u32_u24 v6, 7168, v6")
        a("v_add3_u32 v5, v5, v6, s41")
        a("v_subrev_u32 v%d, %d, v5" % (9 + n, n * 1024))
    a("s_lshl_b32 s44, s39, 11")
    a("s_mul_i32 s45, s39, 3584")
    a("s_add_u32 s45, s45, 8192")
    a("s_mov_b32 s28, 0")
    a("s_mov_b32 s29, 0")
    def dma(slot, kd):
        L = ["s_add_u32 m0, s44, %d" % (slot * SLOT), "s_nop 0",
             "buffer_load_dwordx4 v8, s[8:11], s28 offen lds",
             "buffer_load_dwordx4 v8, s[8:11], s28 offen offset:1024 lds",
             "s_add_u32 m0, s45, %d" % (slot * SLOT), "s_add_u32 s28, s28, 65536",
             "buffer_load_dwordx4 v9, s[12:15], s29 offen lds",
             "buffer_load_dwordx4 v10, s[12:15], s29 offen offset:1024 lds",
             "buffer_load_dwordx4 v11, s[12:15], s29 offen offset:2048 lds",
             "s_mov_b64 exec, 0xffffffff",
             "buffer_load_dwordx4 v12, s[12:15], s29 offen offset:3072 lds",
             "s_mov_b64 exec, -1",
             "s_add_u32 s29, s29, %d" % (32 * 7168)]
        return L
    emit_producer(a, T, NS, 6, dma, None, "L_w1p")
    a("s_endpgm")
    a.label("L_w1_cons")
    ACC = 128; FA = [8, 52]; FB = [36, 80]; VH = 96; VW = 100; VB = 240
    a("s_and_b32 s46, s31, 1")
    a("s_lshr_b32 s47, s31, 1")
    a("s_mul_i32 s38, s47, 224")
    a("s_add_u32 s38, s38, s37")
    a("v_lshlrev_b32 v5, 3, v3")
    a("v_add_u32 v5, s38, v5")
    for fi in range(7):
        a("buffer_load_dwordx2 v[%d:%d], v5, s[20:23], 0 offen offset:%d" % (VB + 2 * fi, VB + 2 * fi + 1, fi * 32))
    GR = 2
    NG = (NS + GR - 1) // GR
    a("s_lshl_b32 s38, s46, 10")
    a("v_lshlrev_b32 v5, 11, v3")
    a("v_lshl_add_u32 v5, v4, 4, v5")
    a("v_add_u32 v5, s38, v5")
    for gI in range(NG): a("v_add_u32 v%d, %d, v5" % (VH + gI, gI * GR * SLOT))
    a("v_lshrrev_b32 v5, 2, v4")
    a("v_lshl_add_u32 v6, v3, 3, v5")
    a("v_and_b32 v7, 1, v3")
    a("v_and_b32 v1, 3, v4")
    a("v_lshlrev_b32 v1, 3, v1")
    a("v_mul_u32_u24 v117, 448, v6")
    a("v_add_u32 v117, v117, v1")
    a("s_mul_i32 s38, s47, 224")
    a("s_add_u32 s38, s38, 8192")
    a("v_add_u32 v117, s38, v117")
    a("v_lshlrev_b32 v118, 5, v7")
    a("v_sub_u32 v119, 0, v118")
    a("s_cmp_eq_u32 s47, 0")
    a("s_cselect_b64 vcc, -1, 0")
    a("v_cndmask_b32 v120, v119, v118, vcc")
    a("v_cndmask_b32 v121, v118, v119, vcc")
    for gI in range(NG):
        a("v_add_u32 v122, %d, v117" % (gI * GR * SLOT))
        a("v_add_u32 v%d, v122, v120" % (VW + 2 * gI))
        a("v_add_u32 v%d, v122, v121" % (VW + 2 * gI + 1))
    assert VW + 2 * NG <= 117
    for r in range(0, 112, 2): a("v_pk_mov_b32 v[%d:%d], 0, 0" % (ACC + r, ACC + r + 1)) if False else (a("v_mov_b32 v%d, 0" % (ACC + r)), a("v_mov_b32 v%d, 0" % (ACC + r + 1)))
    def reads(fs, slot):
        gI, so = slot // GR, (slot % GR) * SLOT
        rb = lambda j: "ds_read_b128 v[%d:%d], v%d offset:%d" % (FB[fs] + 4 * j, FB[fs] + 4 * j + 3, VH + gI, so + j * 256)
        ra = lambda n: ["ds_read_b64_tr_b16 v[%d:%d], v%d offset:%d" % (FA[fs] + 4 * n + 2 * hh, FA[fs] + 4 * n + 2 * hh + 1,
                        VW + 2 * gI + (n & 1), so + 4 * hh * 448 + n * 32) for hh in range(2)]
        L = [rb(0)] + ra(0) + [rb(1), rb(2), rb(3)]
        for n in range(1, 7): L += ra(n)
        return L
    def mfmas(fs):
        L = []
        for fi in range(7):
            for dj in range(4):
                c = ACC + (fi * 4 + dj) * 4
                L.append("v_mfma_f32_16x16x32_bf16 v[%d:%d], v[%d:%d], v[%d:%d], v[%d:%d]" % (
                    c, c + 3, FA[fs] + 4 * fi, FA[fs] + 4 * fi + 3, FB[fs] + 4 * dj, FB[fs] + 4 * dj + 3, c, c + 3))
        return L
    a("s_setprio 1")
    a("s_barrier")
    for x in reads(0, 0): a(x)
    keys = [(t % NS, t % 2, t == T - 1) for t in range(T)]
    def fn(k):
        slot, fs, last = k
        a("s_waitcnt lgkmcnt(0)")
        if last:
            for x in mfmas(fs): a(x)
        else:
            a("s_barrier")
            for x in interleave(mfmas(fs), reads(1 - fs, (slot + 1) % NS), 0, 20): a(x)
    emit_seq(a, keys, 2 * NS, fn, 30, "L_w1c")
    a("s_waitcnt vmcnt(0)")
    a("s_mov_b32 s50, %s" % f32hex(-2.302208198))
    a("s_mov_b32 s51, %s" % f32hex(-0.1029432397))
    a("s_mov_b32 s52, 0xffff0000")
    a("s_mul_i32 s38, s33, 28")
    a("s_mul_i32 s39, s47, 14")
    a("s_add_u32 s38, s38, s39")
    a("s_lshl_b32 s38, s38, 14")
    a("s_add_u32 s38, s38, s36")
    a("s_lshl_b32 s39, s46, 10")
    a("s_add_u32 s53, s38, s39")
    a("v_and_b32 v5, 1, v3")
    a("v_lshrrev_b32 v6, 1, v3")
    a("v_lshlrev_b32 v7, 4, v4")
    a("v_lshl_add_u32 v7, v6, 14, v7")
    a("v_lshl_add_u32 v1, v5, 15, v7")
    a("v_lshl_add_u32 v7, v5, 8, v7")
    a("v_mov_b32 v30, s50")
    a("v_mov_b32 v31, s50")
    a("v_mov_b32 v28, s51")
    a("v_mov_b32 v29, s51")
    a("v_mov_b32 v26, 1.0")
    a("v_mov_b32 v27, 1.0")
    def gelu_tile(fi, dj, o, B):
        c = ACC + (fi * 4 + dj) * 4
        X, Y = 12, 16
        a("v_cvt_pk_bf16_f32 v%d, v%d, v%d" % (o, c, c + 1))
        a("v_cvt_pk_bf16_f32 v%d, v%d, v%d" % (o + 1, c + 2, c + 3))
        a("v_lshlrev_b32 v%d, 16, v%d" % (X, o))
        a("v_and_b32 v%d, s52, v%d" % (X + 1, o))
        a("v_lshlrev_b32 v%d, 16, v%d" % (X + 2, o + 1))
        a("v_and_b32 v%d, s52, v%d" % (X + 3, o + 1))
        a("v_pk_add_f32 v[%d:%d], v[%d:%d], v[%d:%d]" % (X, X + 1, X, X + 1, B, B + 1))
        a("v_pk_add_f32 v[%d:%d], v[%d:%d], v[%d:%d]" % (X + 2, X + 3, X + 2, X + 3, B + 2, B + 3))
        a("v_cvt_pk_bf16_f32 v%d, v%d, v%d" % (o, X, X + 1))
        a("v_cvt_pk_bf16_f32 v%d, v%d, v%d" % (o + 1, X + 2, X + 3))
        a("v_lshlrev_b32 v%d, 16, v%d" % (X, o))
        a("v_and_b32 v%d, s52, v%d" % (X + 1, o))
        a("v_lshlrev_b32 v%d, 16, v%d" % (X + 2, o + 1))
        a("v_and_b32 v%d, s52, v%d" % (X + 3, o + 1))
        for h in (0, 2): a("v_pk_mul_f32 v[%d:%d], v[%d:%d], v[%d:%d]" % (Y + h, Y + h + 1, X + h, X + h + 1, X + h, X + h + 1))
        for h in (0, 2): a("v_pk_fma_f32 v[%d:%d], v[%d:%d], v[28:29], v[30:31]" % (Y + h, Y + h + 1, Y + h, Y + h + 1))
        for h in (0, 2): a("v_pk_mul_f32 v[%d:%d], v[%d:%d], v[%d:%d]" % (Y + h, Y + h + 1, Y + h, Y + h + 1, X + h, X + h + 1))
        for e in range(4): a("v_exp_f32 v%d, v%d" % (Y + e, Y + e))
        a("s_nop 0")
        for h in (0, 2): a("v_pk_add_f32 v[%d:%d], v[%d:%d], v[26:27]" % (Y + h, Y + h + 1, Y + h, Y + h + 1))
        for e in range(4): a("v_rcp_f32 v%d, v%d" % (Y + e, Y + e))
        a("s_nop 0")
        for h in (0, 2): a("v_pk_mul_f32 v[%d:%d], v[%d:%d], v[%d:%d]" % (Y + h, Y + h + 1, Y + h, Y + h + 1, X + h, X + h + 1))
        a("v_cvt_pk_bf16_f32 v%d, v%d, v%d" % (o, Y, Y + 1))
        a("v_cvt_pk_bf16_f32 v%d, v%d, v%d" % (o + 1, Y + 2, Y + 3))
    def bias_unpack(fi, B):
        a("v_lshlrev_b32 v%d, 16, v%d" % (B, VB + 2 * fi))
        a("v_and_b32 v%d, s52, v%d" % (B + 1, VB + 2 * fi))
        a("v_lshlrev_b32 v%d, 16, v%d" % (B + 2, VB + 2 * fi + 1))
        a("v_and_b32 v%d, s52, v%d" % (B + 3, VB + 2 * fi + 1))
    nst = 0
    for fp in range(3):
        bias_unpack(2 * fp, 20); bias_unpack(2 * fp + 1, 32)
        for dj in range(4):
            o = 40 + 4 * (nst % 4); nst += 1
            gelu_tile(2 * fp, dj, o, 20)
            gelu_tile(2 * fp + 1, dj, o + 2, 32)
            a("s_nop 1")
            a("v_permlane16_swap_b32 v%d, v%d" % (o, o + 2))
            a("v_permlane16_swap_b32 v%d, v%d" % (o + 1, o + 3))
            a("s_add_u32 s38, s53, %d" % (fp * 4 * 16384))
            a("buffer_store_dwordx4 v[%d:%d], v1, s[16:19], s38 offen offset:%d" % (o, o + 3, dj * 256))
    bias_unpack(6, 20)
    for dp in range(2):
        o = 40 + 4 * (nst % 4); nst += 1
        gelu_tile(6, 2 * dp, o, 20)
        gelu_tile(6, 2 * dp + 1, o + 2, 20)
        a("s_nop 1")
        a("v_permlane16_swap_b32 v%d, v%d" % (o, o + 2))
        a("v_permlane16_swap_b32 v%d, v%d" % (o + 1, o + 3))
        a("s_add_u32 s38, s53, %d" % (12 * 16384))
        a("buffer_store_dwordx4 v[%d:%d], v7, s[16:19], s38 offen offset:%d" % (o, o + 3, dp * 512))
    a("s_endpgm")
```

```python
from common import *
from k_main1 import emit_producer

Q_NS = 5
Q_XB, Q_HB, Q_WB = 0, 16384, 17408
Q_SLOT = 17408 + 12288
AQ, AK, AV, AH = 0, 16384, 16384 + 17408, 16384 + 2 * 17408
PSQ, PSK = 128 * 64, 136 * 64

def insert_waits(seq, carried):
    out = []
    pend = list(carried)
    for kind, text, defs, uses in seq:
        if kind == 'mf':
            need = -1
            for idx, d in enumerate(pend):
                if d & uses: need = idx
            if need >= 0:
                n = len(pend) - 1 - need
                out.append("s_waitcnt lgkmcnt(%d)" % min(n, 15))
                pend = pend[need + 1:] if n <= 15 else pend[len(pend) - 15:]
            out.append(text)
        elif kind == 'rd':
            out.append(text); pend.append(defs)
        elif kind == 'w0':
            out.append("s_waitcnt lgkmcnt(0)"); pend = []
        else:
            out.append(text)
    return out, pend

def qkv_path(a, cfg):
    NS, SLOT, T = Q_NS, Q_SLOT, 32
    a("s_lshl_b32 s36, s32, 12")
    a("s_lshl_b32 s37, s33, 7")
    a("v_lshrrev_b32 v5, 2, v4")
    a("v_lshl_add_u32 v6, v3, 3, v5")
    a("v_mul_u32_u24 v6, 384, v6")
    a("v_and_b32 v7, 3, v4")
    a("v_lshl_add_u32 v6, v7, 3, v6")
    a("v_lshrrev_b32 v5, 3, v4")
    a("v_and_b32 v7, 1, v3")
    a("v_lshl_or_b32 v5, v7, 1, v5")
    a("s_cmp_lt_u32 s31, 4")
    a("s_cbranch_scc1 L_q_cons")
    a("s_sub_u32 s39, s31, 4")
    a("s_lshr_b32 s46, s39, 1")
    a("s_and_b32 s47, s39, 1")
    a("s_lshl_b32 s38, s46, 1")
    for n in range(2):
        a("s_add_u32 s40, s38, %d" % n)
        a("v_xor_b32 v7, s40, v5")
        a("v_lshl_add_u32 v7, v7, 5, v6")
        a("s_lshl_b32 s40, s47, 7")
        a("s_add_u32 s40, s40, %d" % (Q_WB + 128))
        a("v_add_u32 v%d, s40, v7" % (20 + n))
        a("v_add_u32 v%d, %d, v%d" % (23 + n, 2 * SLOT, 20 + n))
        a("v_add_u32 v%d, %d, v%d" % (26 + n, 4 * SLOT, 20 + n))
    a("v_lshlrev_b32 v7, 8, v3")
    a("v_lshl_add_u32 v7, v4, 4, v7")
    a("v_add_u32 v22, %d, v7" % Q_HB)
    a("v_add_u32 v25, %d, v7" % (Q_HB + 2 * SLOT))
    a("v_add_u32 v28, %d, v7" % (Q_HB + 4 * SLOT))
    for r in range(8): a("v_mov_b32 v%d, 0" % (48 + r))
    a("s_lshl_b32 s38, s39, 15")
    a("s_add_u32 s38, s38, s36")
    a("v_lshlrev_b32 v8, 4, v2")
    a("v_add_u32 v8, s38, v8")
    a("v_lshlrev_b32 v9, 2, v2")
    a("s_sub_u32 s38, s38, 256")
    a("s_max_i32 s38, s38, 0")
    a("v_add_u32 v9, s38, v9")
    M, sh = magic_div(24, 256)
    a("s_mul_i32 s41, s39, %d" % (8 * 6144))
    a("s_add_u32 s41, s41, s37")
    a("s_and_b32 s40, s39, 1")
    a("s_lshl_b32 s40, s40, 1")
    for n in range(3):
        a("v_add_u32 v13, %d, v2" % (64 * n))
        a("v_mul_u32_u24 v14, %d, v13" % M)
        a("v_lshrrev_b32 v14, %d, v14" % sh)
        a("v_mul_u32_u24 v15, 24, v14")
        a("v_sub_u32 v13, v13, v15")
        a("v_lshrrev_b32 v15, 1, v14")
        a("v_and_b32 v15, 1, v15")
        a("v_or_b32 v15, s40, v15")
        a("v_lshlrev_b32 v15, 1, v15")
        a("v_xor_b32 v13, v13, v15")
        a("v_lshrrev_b32 v15, 3, v13")
        a("v_and_b32 v13, 7, v13")
        a("v_lshlrev_b32 v13, 4, v13")
        a("v_lshl_add_u32 v13, v15, 11, v13")
        a("v_mul_u32_u24 v14, 6144, v14")
        a("v_add3_u32 v13, v13, v14, s41")
        a("v_subrev_u32 v%d, %d, v13" % (10 + n, n * 1024))
    a("s_lshl_b32 s44, s39, 12")
    a("s_mul_i32 s45, s39, 3072")
    a("s_add_u32 s45, s45, %d" % Q_WB)
    a("s_lshl_b32 s43, s39, 8")
    a("s_add_u32 s43, s43, %d" % Q_HB)
    a("s_mov_b32 s28, 0")
    a("s_mov_b32 s29, 0")
    def dma(slot, kd):
        b = slot * SLOT
        return ["s_add_u32 m0, s44, %d" % b, "s_nop 0",
                "buffer_load_dwordx4 v8, s[8:11], s28 offen lds",
                "buffer_load_dwordx4 v8, s[8:11], s28 offen offset:1024 lds",
                "buffer_load_dwordx4 v8, s[8:11], s28 offen offset:2048 lds",
                "buffer_load_dwordx4 v8, s[8:11], s28 offen offset:3072 lds",
                "s_add_u32 m0, s43, %d" % b, "s_nop 0",
                "buffer_load_dword v9, s[8:11], s28 offen lds",
                "s_add_u32 m0, s45, %d" % b, "s_add_u32 s28, s28, 131072",
                "buffer_load_dwordx4 v10, s[12:15], s29 offen lds",
                "buffer_load_dwordx4 v11, s[12:15], s29 offen offset:1024 lds",
                "buffer_load_dwordx4 v12, s[12:15], s29 offen offset:2048 lds",
                "s_add_u32 s29, s29, %d" % (32 * 6144)]
    def extra(slot):
        gI, so = slot // 2, (slot % 2) * SLOT
        vb = 20 + 3 * gI
        L = ["ds_read_b128 v[32:35], v%d offset:%d" % (vb + 2, so)]
        for n in range(2):
            for hh in range(2):
                L.append("ds_read_b64_tr_b16 v[%d:%d], v%d offset:%d" % (36 + 4 * n + 2 * hh, 37 + 4 * n + 2 * hh, vb + n, so + hh * 4 * 384))
        L.append("s_waitcnt lgkmcnt(0)")
        for n in range(2):
            L.append("v_mfma_f32_16x16x32_bf16 v[%d:%d], v[%d:%d], v[32:35], v[%d:%d]" % (48 + 4 * n, 51 + 4 * n, 36 + 4 * n, 39 + 4 * n, 48 + 4 * n, 51 + 4 * n))
        return L
    emit_producer(a, T, NS, 8, dma, extra, "L_qp")
    a("v_and_b32 v5, 1, v4")
    a("v_mul_u32_u24 v5, %d, v5" % PSK)
    a("v_lshrrev_b32 v6, 1, v4")
    a("v_lshl_add_u32 v5, v6, 6, v5")
    a("v_and_b32 v7, 1, v3")
    a("v_lshl_add_u32 v5, v7, 3, v5")
    a("s_mul_i32 s38, s46, %d" % AH)
    a("s_mul_i32 s40, s47, %d" % (AV - AK))
    a("s_add_u32 s38, s38, s40")
    a("s_add_u32 s38, s38, %d" % AK)
    a("v_add_u32 v5, s38, v5")
    a("v_lshrrev_b32 v6, 2, v4")
    a("v_lshrrev_b32 v7, 1, v3")
    a("v_xor_b32 v6, v6, v7")
    a("v_lshl_add_u32 v13, v6, 4, v5")
    a("v_xor_b32 v6, 2, v6")
    a("v_lshl_add_u32 v14, v6, 4, v5")
    for n in range(2):
        a("v_cvt_pk_bf16_f32 v%d, v%d, v%d" % (32 + 2 * n, 48 + 4 * n, 49 + 4 * n))
        a("v_cvt_pk_bf16_f32 v%d, v%d, v%d" % (33 + 2 * n, 50 + 4 * n, 51 + 4 * n))
    a("s_barrier")
    a("ds_write_b64 v13, v[32:33]")
    a("ds_write_b64 v14, v[34:35]")
    a("s_branch L_q_attn")
    a.label("L_q_cons")
    ACC = 64; FX = 8; FW = 40
    VX, VW0 = 1, 2
    a("s_and_b32 s46, s31, 1")
    a("s_lshr_b32 s47, s31, 1")
    a("s_lshl_b32 s38, s47, 1")
    a("v_xor_b32 v7, s38, v5")
    a("v_lshl_add_u32 v7, v7, 5, v6")
    a("s_add_u32 s38, s38, 1")
    a("v_xor_b32 v5, s38, v5")
    a("v_lshl_add_u32 v5, v5, 5, v6")
    a("v_add_u32 v6, %d, v7" % Q_WB)
    a("v_add_u32 v7, %d, v5" % Q_WB)
    a("v_lshlrev_b32 v5, 12, v3")
    a("v_lshl_add_u32 v5, v4, 4, v5")
    a("s_lshl_b32 s38, s46, 11")
    a("v_add_u32 v5, s38, v5")
    VXa, VWa = 5, 6
    for r in range(192): a("v_mov_b32 v%d, 0" % (ACC + r))
    def rs(b, n): return set(range(b, b + n))
    def rdX(s): return ('rd', "ds_read_b128 v[%d:%d], v%d offset:%d" % (FX + 4 * s, FX + 4 * s + 3, VXa, s * 256), rs(FX + 4 * s, 4), None)
    def rdW(n): return [('rd', "ds_read_b64_tr_b16 v[%d:%d], v%d offset:%d" % (FW + 4 * n + 2 * hh, FW + 4 * n + 2 * hh + 1, VWa + (n & 1),
                          (n >> 1) * 128 + hh * 4 * 384), rs(FW + 4 * n + 2 * hh, 2), None) for hh in range(2)]
    def mf(n, s):
        c = ACC + (n * 8 + s) * 4
        return ('mf', "v_mfma_f32_16x16x32_bf16 v[%d:%d], v[%d:%d], v[%d:%d], v[%d:%d]" % (
            c, c + 3, FW + 4 * n, FW + 4 * n + 3, FX + 4 * s, FX + 4 * s + 3, c, c + 3), None, rs(FW + 4 * n, 4) | rs(FX + 4 * s, 4))
    order = []
    for s in range(8): order += [(0, s), (1, s)]
    for n in (2, 3):
        for s in range(8): order.append((n, s))
    for s in range(8): order += [(4, s), (5, s)]
    BARPOS = 17
    def substep(slot, first, last):
        nxt = (slot + 1) % NS
        delta = (nxt - slot) * SLOT
        fill = {i: [] for i in range(48)}
        if not first:
            w45 = rdW(4) + rdW(5)
            for j, x in enumerate(w45): fill[4 + 2 * j].append(x)
        if not last:
            fill[BARPOS - 3].append(('x', "v_add_u32 v%d, %d, v%d" % (VWa, delta & 0xffffffff, VWa), None, None))
            fill[BARPOS - 2].append(('x', "v_add_u32 v%d, %d, v%d" % (VWa + 1, delta & 0xffffffff, VWa + 1), None, None))
            fill[BARPOS - 1].append(('x', "v_add_u32 v%d, %d, v%d" % (VXa, delta & 0xffffffff, VXa), None, None))
            fill[BARPOS].append(('w0', None, None, None))
            fill[BARPOS].append(('x', "s_barrier", None, None))
            for j, x in enumerate(rdW(0) + rdW(1)): fill[BARPOS + 1 + j].append(x)
            for j, x in enumerate(rdW(2)): fill[24 + j].append(x)
            for j, x in enumerate(rdW(3)): fill[32 + 2 * j].append(x)
            for s in range(8): fill[32 + 2 * s + 1].append(rdX(s))
        seq = []
        for i, (n, s) in enumerate(order):
            seq.append(mf(n, s)); seq += fill[i]
        return seq
    a("s_setprio 1")
    a("s_barrier")
    pro = rdW(0) + rdW(1) + rdW(2) + rdW(3) + [rdX(s) for s in range(8)] + rdW(4) + rdW(5)
    out, pend = insert_waits(pro + substep(0, True, False), [])
    for x in out: a(x)
    steady_in = pend
    o2, pend2 = insert_waits(substep(1, False, False), steady_in)
    assert pend2 == steady_in
    keys = [(t % NS, t == T - 1) for t in range(1, T)]
    def fn(k):
        slot, last = k
        o, _ = insert_waits(substep(slot, False, last), steady_in)
        for x in o: a(x)
    emit_seq(a, keys, NS, fn, 30, "L_qc")
    a("s_setprio 0")
    a("v_and_b32 v2, 63, v0")
    a("v_lshrrev_b32 v3, 4, v2")
    a("v_and_b32 v4, 15, v2")
    a("v_lshrrev_b32 v6, 1, v4")
    a("v_lshlrev_b32 v5, 6, v6")
    a("v_and_b32 v7, 1, v3")
    a("v_lshl_add_u32 v5, v7, 3, v5")
    a("s_mul_i32 s38, s47, %d" % AH)
    a("s_lshl_b32 s40, s46, 12")
    a("s_add_u32 s38, s38, s40")
    a("v_add_u32 v5, s38, v5")
    a("v_lshrrev_b32 v6, 2, v4")
    a("v_lshrrev_b32 v7, 1, v3")
    a("v_xor_b32 v6, v6, v7")
    a("v_lshl_add_u32 v8, v6, 4, v5")
    a("v_xor_b32 v6, 2, v6")
    a("v_lshl_add_u32 v9, v6, 4, v5")
    a("v_and_b32 v7, 1, v4")
    a("v_mul_u32_u24 v6, %d, v7" % PSQ)
    a("v_mul_u32_u24 v7, %d, v7" % PSK)
    a("v_add_u32 v10, v8, v6")
    a("v_add_u32 v11, v9, v6")
    a("v_add_u32 v12, v8, v7")
    a("v_add_u32 v13, v9, v7")
    a("s_barrier")
    cnt = 0
    for n in range(6):
        for s in range(8):
            c = ACC + (n * 8 + s) * 4
            o = 16 + 2 * (cnt % 8); cnt += 1
            a("v_cvt_pk_bf16_f32 v%d, v%d, v%d" % (o, c, c + 1))
            a("v_cvt_pk_bf16_f32 v%d, v%d, v%d" % (o + 1, c + 2, c + 3))
            part = n >> 1
            base = [AQ, AK + 512, AV + 512][part]
            a("ds_write_b64 v%d, v[%d:%d] offset:%d" % ((10 if part == 0 else 12) + (n & 1), o, o + 1, base + s * 512))
    a.label("L_q_attn")
    a("s_lshr_b32 s46, s31, 2")
    a("s_and_b32 s47, s31, 3")
    a("v_lshrrev_b32 v5, 1, v4")
    a("v_and_b32 v5, 3, v5")
    a("v_xor_b32 v5, v5, v3")
    a("v_lshlrev_b32 v5, 4, v5")
    a("v_lshl_add_u32 v5, v4, 6, v5")
    a("s_mul_i32 s38, s46, %d" % AH)
    a("s_lshl_b32 s40, s47, 11")
    a("s_add_u32 s38, s38, s40")
    a("v_add_u32 v5, s38, v5")
    a("v_lshrrev_b32 v6, 2, v4")
    a("v_lshl_add_u32 v6, v3, 2, v6")
    a("v_lshrrev_b32 v7, 1, v6")
    a("v_and_b32 v7, 3, v7")
    a("v_lshrrev_b32 v8, 1, v4")
    a("v_and_b32 v8, 1, v8")
    a("v_xor_b32 v7, v7, v8")
    a("v_lshlrev_b32 v6, 6, v6")
    a("v_and_b32 v8, 1, v4")
    a("v_lshl_add_u32 v6, v8, 3, v6")
    a("v_add_u32 v6, s38, v6")
    a("v_lshl_add_u32 v8, v7, 4, v6")
    a("v_xor_b32 v7, 2, v7")
    a("v_lshl_add_u32 v9, v7, 4, v6")
    a("v_lshlrev_b32 v6, 2, v3")
    a("v_sub_u32 v6, v4, v6")
    for tau in range(2):
        for r in range(4):
            a("v_add_u32 v7, %d, v6" % ((16 * (1 - tau) - r) & 0xffffffff))
            a("v_cmp_gt_u32 s[%d:%d], 8, v7" % (56 + 2 * (4 * tau + r), 57 + 2 * (4 * tau + r)))
    a("s_or_b32 s38, s32, s47")
    a("s_cmp_eq_u32 s38, 0")
    a("s_cselect_b64 s[72:73], 0, -1")
    for r in range(4):
        a("s_and_b64 s[%d:%d], s[%d:%d], s[72:73]" % (74 + 2 * r, 75 + 2 * r, 56 + 2 * r, 57 + 2 * r))
    a("s_mov_b32 s52, 0xffff0000")
    a("s_mov_b32 s53, %s" % f32hex(32 ** -0.5))
    a("s_mov_b32 s54, %s" % f32hex(1.4426950408889634))
    a("v_mov_b32 v10, %s" % f32hex(-1e9))
    a("v_and_b32 v6, 1, v3")
    a("v_lshrrev_b32 v7, 1, v3")
    a("v_lshl_add_u32 v6, v6, 1, v7")
    a("v_lshlrev_b32 v6, 15, v6")
    a("v_lshl_add_u32 v11, v4, 5, v6")
    a("s_lshl_b32 s38, s33, 1")
    a("s_add_u32 s38, s38, s46")
    a("s_lshl_b32 s38, s38, 17")
    a("s_add_u32 s38, s38, s36")
    a("s_lshl_b32 s40, s47, 10")
    a("s_add_u32 s55, s38, s40")
    a("s_waitcnt lgkmcnt(0)")
    a("s_barrier")
    blocks = [(p, b) for p in range(2) for b in range(2)]
    RB = lambda k: 16 + 48 * k
    for k, (p, b) in enumerate(blocks):
        R = RB(k)
        a("ds_read_b128 v[%d:%d], v5 offset:%d" % (R, R + 3, AQ + p * PSQ + b * 1024))
        for tau in range(2):
            off = AK + p * PSK + (16 * b - 8 + 16 * tau) * 64
            a("ds_read_b128 v[%d:%d], v5 offset:%d" % (R + 4 + 4 * tau, R + 7 + 4 * tau, off))
    for k, (p, b) in enumerate(blocks):
        R = RB(k)
        for dt in range(2):
            for tau in range(2):
                off = AV + p * PSK + (16 * b - 8 + 16 * tau) * 64
                a("ds_read_b64_tr_b16 v[%d:%d], v%d offset:%d" % (R + 12 + 4 * dt + 2 * tau, R + 13 + 4 * dt + 2 * tau, 8 + dt, off))
    for k in range(4):
        R = RB(k)
        a("s_waitcnt lgkmcnt(%d)" % min(15, 16 + 3 * (3 - k)))
        if k == 0: a("s_waitcnt lgkmcnt(15)")
        for tau in range(2):
            a("v_mfma_f32_16x16x32_bf16 v[%d:%d], v[%d:%d], v[%d:%d], 0" % (R + 20 + 4 * tau, R + 23 + 4 * tau, R + 4 + 4 * tau, R + 7 + 4 * tau, R, R + 3))
    a("s_nop 7")
    def forall(fn):
        for k in range(4): fn(k, RB(k))
    def f1(k, R):
        for h in range(4): a("v_cvt_pk_bf16_f32 v%d, v%d, v%d" % (R + h, R + 20 + 2 * h, R + 21 + 2 * h))
    forall(f1)
    def f2(k, R):
        for h in range(4):
            a("v_lshlrev_b32 v%d, 16, v%d" % (R + 20 + 2 * h, R + h))
            a("v_and_b32 v%d, s52, v%d" % (R + 21 + 2 * h, R + h))
        for e in range(8): a("v_mul_f32 v%d, s53, v%d" % (R + 20 + e, R + 20 + e))
        for h in range(4): a("v_cvt_pk_bf16_f32 v%d, v%d, v%d" % (R + h, R + 20 + 2 * h, R + 21 + 2 * h))
        for h in range(4):
            a("v_lshlrev_b32 v%d, 16, v%d" % (R + 20 + 2 * h, R + h))
            a("v_and_b32 v%d, s52, v%d" % (R + 21 + 2 * h, R + h))
        for e in range(8):
            sm = (74 + 2 * e) if (e < 4 and blocks[k][1] == 0) else (56 + 2 * e)
            a("v_cndmask_b32 v%d, v10, v%d, s[%d:%d]" % (R + 20 + e, R + 20 + e, sm, sm + 1))
        a("v_max3_f32 v%d, v%d, v%d, v%d" % (R + 28, R + 20, R + 21, R + 22))
        a("v_max3_f32 v%d, v%d, v%d, v%d" % (R + 29, R + 23, R + 24, R + 25))
        a("v_max3_f32 v%d, v%d, v%d, v%d" % (R + 28, R + 28, R + 26, R + 27))
        a("v_max_f32 v%d, v%d, v%d" % (R + 28, R + 28, R + 29))
    forall(f2)
    def xred(op):
        for sw in ("v_permlane16_swap_b32", "v_permlane32_swap_b32"):
            forall(lambda k, R: a("v_mov_b32 v%d, v%d" % (R + 29, R + 28)))
            a("s_nop 0")
            forall(lambda k, R: a("%s v%d, v%d" % (sw, R + 28, R + 29)))
            forall(lambda k, R: a("%s v%d, v%d, v%d" % (op, R + 28, R + 28, R + 29)))
    xred("v_max_f32")
    def f3(k, R):
        for e in range(8): a("v_sub_f32 v%d, v%d, v%d" % (R + 20 + e, R + 20 + e, R + 28))
        for e in range(8): a("v_mul_f32 v%d, s54, v%d" % (R + 20 + e, R + 20 + e))
        for e in range(8): a("v_exp_f32 v%d, v%d" % (R + 20 + e, R + 20 + e))
        a("s_nop 0")
        a("v_add_f32 v%d, v%d, v%d" % (R + 28, R + 20, R + 21))
        a("v_add_f32 v%d, v%d, v%d" % (R + 29, R + 22, R + 23))
        a("v_add_f32 v%d, v%d, v%d" % (R + 28, R + 28, R + 24))
        a("v_add_f32 v%d, v%d, v%d" % (R + 29, R + 29, R + 25))
        a("v_add_f32 v%d, v%d, v%d" % (R + 28, R + 28, R + 26))
        a("v_add_f32 v%d, v%d, v%d" % (R + 29, R + 29, R + 27))
        a("v_add_f32 v%d, v%d, v%d" % (R + 28, R + 28, R + 29))
    forall(f3)
    xred("v_add_f32")
    forall(lambda k, R: a("v_rcp_f32 v%d, v%d" % (R + 28, R + 28)))
    def f4(k, R):
        for e in range(8): a("v_mul_f32 v%d, v%d, v%d" % (R + 20 + e, R + 20 + e, R + 28))
        for h in range(4): a("v_cvt_pk_bf16_f32 v%d, v%d, v%d" % (R + h, R + 20 + 2 * h, R + 21 + 2 * h))
    forall(f4)
    a("s_waitcnt lgkmcnt(0)")
    a("s_nop 0")
    def f5(k, R):
        for dt in range(2):
            a("v_mfma_f32_16x16x32_bf16 v[%d:%d], v[%d:%d], v[%d:%d], 0" % (R + 36 + 4 * dt, R + 39 + 4 * dt, R + 12 + 4 * dt, R + 15 + 4 * dt, R, R + 3))
    forall(f5)
    a("s_nop 7")
    def f6(k, R):
        for h in range(4): a("v_cvt_pk_bf16_f32 v%d, v%d, v%d" % (R + 4 + h, R + 36 + 2 * h, R + 37 + 2 * h))
    forall(f6)
    def f7(k, R):
        a("v_permlane16_swap_b32 v%d, v%d" % (R + 4, R + 6))
        a("v_permlane16_swap_b32 v%d, v%d" % (R + 5, R + 7))
    forall(f7)
    def f8(k, R):
        p, b = blocks[k]
        a("buffer_store_dwordx4 v[%d:%d], v11, s[16:19], s55 offen offset:%d" % (R + 4, R + 7, p * 16 + b * 512))
    forall(f8)
    a("s_endpgm")
```

```python
import sys, json
from common import *
from k_ln import gen_ln
from k_main1 import w1_path, W1_NS, W1_SLOT
from k_qkv import qkv_path, Q_NS, Q_SLOT
from k_final import gen_final

def gen_main1(a, cfg):
    name = "main1_kernel"
    kernel_header(a, name)
    a("s_cmp_ge_u32 s2, 256")
    a("s_cbranch_scc1 L_m1_end")
    a("s_load_dwordx2 s[40:41], s[0:1], 8")
    a("s_load_dwordx4 s[4:7], s[0:1], 32")
    a("s_load_dwordx2 s[34:35], s[0:1], 88")
    a("v_lshrrev_b32 v1, 6, v0")
    a("v_and_b32 v2, 63, v0")
    a("v_lshrrev_b32 v3, 4, v2")
    a("v_and_b32 v4, 15, v2")
    a("v_readfirstlane_b32 s31, v1")
    a("s_and_b32 s3, s2, 7")
    a("s_lshr_b32 s30, s2, 3")
    a("s_and_b32 s32, s3, 1")
    a("s_lshl_b32 s32, s32, 2")
    a("s_and_b32 s38, s30, 3")
    a("s_add_u32 s32, s32, s38")
    a("s_lshr_b32 s33, s3, 1")
    a("s_lshl_b32 s33, s33, 2")
    a("s_lshr_b32 s38, s30, 2")
    a("s_and_b32 s38, s38, 3")
    a("s_add_u32 s33, s33, s38")
    a("s_cmp_ge_u32 s30, 16")
    a("s_waitcnt lgkmcnt(0)")
    a("s_cbranch_scc1 L_m1_qkv")
    ws_srd(a, 8, 34, WS_HT, 4 * MB)
    make_srd(a, 12, 4, 2048 * 7168)
    ws_srd(a, 16, 34, WS_U, 448 * 16384)
    make_srd(a, 20, 6, 7168)
    w1_path(a, cfg)
    a.label("L_m1_qkv")
    ws_srd(a, 8, 34, WS_XO, 4 * MB)
    make_srd(a, 12, 40, 1024 * 6144)
    ws_srd(a, 16, 34, WS_O, 4 * MB)
    qkv_path(a, cfg)
    a.label("L_m1_end")
    a("s_endpgm")
    return dict(name=name, grid=256, block=512, lds=max(W1_NS * W1_SLOT, Q_NS * Q_SLOT), vgpr=256, sgpr=88)

HEADER = open("gated_mix__sliding_local_dilated__mixer_token_mlp__prompt.s.ref").read().split("; Override launch")[0]

def build(cfg):
    body = Asm()
    ks = [gen_ln(body, cfg), gen_main1(body, cfg), gen_final(body, cfg)]
    out = HEADER
    for k in ks:
        out += "; @launch kernel=%s grid=(%d,1,1) block=(%d,1,1) lds=%d\n" % (k["name"], k["grid"], k["block"], k["lds"])
    out += '.amdgcn_target "amdgcn-amd-amdhsa--gfx950"\n.text\n'
    out += body.text()
    out += '.section .rodata,"a"\n'
    for k in ks:
        out += kernel_desc(k["name"], k["vgpr"], k["sgpr"])
    return out

if __name__ == "__main__":
    cfg = json.loads(sys.argv[2]) if len(sys.argv) > 2 else {}
    open(sys.argv[1], "w").write(build(cfg))
```

```python
import struct, math
from gemmlib import *

def f32hex(x): return "0x%08x" % struct.unpack("<I", struct.pack("<f", x))[0]

MB = 1 << 20
WS_HT, WS_XO, WS_U, WS_O, WS_G, WS_FLAG, WS_P, WS_T = 0, 4 * MB, 8 * MB, 16 * MB, 20 * MB, 21 * MB, 22 * MB, 48 * MB

def ws_srd(a, dst, wsreg, off, nbytes):
    if off:
        a("s_add_u32 s%d, s%d, 0x%x" % (dst, wsreg, off))
        a("s_addc_u32 s%d, s%d, 0" % (dst + 1, wsreg + 1))
        a("s_and_b32 s%d, s%d, 0xffff" % (dst + 1, dst + 1))
    else:
        a("s_mov_b32 s%d, s%d" % (dst, wsreg))
        a("s_and_b32 s%d, s%d, 0xffff" % (dst + 1, wsreg + 1))
    a("s_mov_b32 s%d, 0x%x" % (dst + 2, nbytes))
    a("s_mov_b32 s%d, 0x00020000" % (dst + 3))

def flat(L):
    o = []
    for x in L:
        if isinstance(x, (list, tuple)): o.extend(flat(x))
        else: o.append(x)
    return o

def emit_seq(a, keys, period, emit_fn, ctr, name):
    t = 0
    N = len(keys)
    while t < N:
        n = 1
        if t + period <= N:
            while t + (n + 1) * period <= N and keys[t + n * period:t + (n + 1) * period] == keys[t:t + period]:
                n += 1
        if n >= 2 and t + period <= N:
            lab = a.newlabel(name)
            a("s_mov_b32 s%d, %d" % (ctr, n))
            a.label(lab)
            for k in keys[t:t + period]: emit_fn(k)
            a("s_sub_u32 s%d, s%d, 1" % (ctr, ctr))
            a("s_cmp_lg_u32 s%d, 0" % ctr)
            a("s_cbranch_scc1 %s" % lab)
            t += n * period
        else:
            emit_fn(keys[t]); t += 1

def wave_allreduce(a, R, op, T):
    n = len(R)
    pad = {1: "s_nop 1", 2: "s_nop 0"}.get(n)
    for ctrl in ("quad_perm:[1,0,3,2]", "quad_perm:[2,3,0,1]", "row_half_mirror", "row_mirror"):
        if pad: a(pad)
        for r in R:
            a("%s_dpp v%d, v%d, v%d %s row_mask:0xf bank_mask:0xf" % (op, r, r, r, ctrl))
    for sw in ("v_permlane16_swap_b32", "v_permlane32_swap_b32"):
        for r, t in zip(R, T): a("v_mov_b32 v%d, v%d" % (t, r))
        a("s_nop 1")
        for r, t in zip(R, T): a("%s v%d, v%d" % (sw, r, t))
        for r, t in zip(R, T): a("%s v%d, v%d, v%d" % (op, r, r, t))

STAMPS = [False]
def stamp(a, idx):
    if STAMPS[0]:
        a("s_memrealtime s[98:99]")
        a("s_memtime s[100:101]")
        a("s_waitcnt lgkmcnt(0)")
        a("s_mov_b32 s%d, s98" % (88 + idx))
        a("s_mov_b32 s%d, s100" % (92 + idx))
def stamp_store(a, kidx, wsreg=34):
    if not STAMPS[0]: return
    a("s_waitcnt vmcnt(0)")
    stamp(a, 3)
    ws_srd(a, 96, wsreg, WS_T + kidx * 65536, 65536)
    a("s_lshl_b32 s86, s2, 8")
    a("s_lshl_b32 s87, s31, 5")
    a("s_add_u32 s86, s86, s87")
    a("s_mov_b64 exec, 1")
    for i in range(8): a("v_mov_b32 v%d, s%d" % (4 + i, 88 + i))
    a("v_mov_b32 v1, 0")
    a("buffer_store_dwordx4 v[4:7], v1, s[96:99], s86 offen")
    a("buffer_store_dwordx4 v[8:11], v1, s[96:99], s86 offen offset:16")
```

```python
from common import *
from k_main1 import emit_producer

F_SLOT = 16384
def gen_final(a, cfg):
    name = "final_kernel"
    NS = cfg.get("f_ns", 8)
    XS = cfg.get("f_split", 48)
    kernel_header(a, name)
    a("s_cmp_ge_u32 s2, 256")
    a("s_cbranch_scc1 L_f_end")
    stamp(a, 0)
    a("s_load_dwordx2 s[4:5], s[0:1], 16")
    a("s_load_dwordx4 s[40:43], s[0:1], 48")
    a("s_load_dwordx2 s[6:7], s[0:1], 72")
    a("s_load_dwordx2 s[34:35], s[0:1], 88")
    a("v_lshrrev_b32 v1, 6, v0")
    a("v_and_b32 v2, 63, v0")
    a("v_lshrrev_b32 v3, 4, v2")
    a("v_and_b32 v4, 15, v2")
    a("v_readfirstlane_b32 s31, v1")
    a("s_and_b32 s3, s2, 7")
    a("s_lshr_b32 s30, s2, 3")
    a("s_lshr_b32 s48, s3, 2")
    a("s_and_b32 s32, s3, 1")
    a("s_lshl_b32 s32, s32, 3")
    a("s_and_b32 s38, s30, 7")
    a("s_add_u32 s32, s32, s38")
    a("s_lshr_b32 s33, s3, 1")
    a("s_and_b32 s33, s33, 1")
    a("s_lshl_b32 s33, s33, 2")
    a("s_lshr_b32 s38, s30, 3")
    a("s_add_u32 s33, s33, s38")
    a("s_lshl_b32 s49, s32, 3")
    a("s_add_u32 s49, s49, s33")
    a("s_waitcnt lgkmcnt(0)")
    make_srd(a, 8, 4, 2 * MB)
    ws_srd(a, 12, 34, WS_O, 4 * MB)
    make_srd(a, 16, 40, 3584 * 4096)
    ws_srd(a, 20, 34, WS_U, 448 * 16384)
    a("s_cmp_lt_u32 s31, 4")
    a("s_cbranch_scc1 L_f_cons")
    a("s_sub_u32 s39, s31, 4")
    a("v_lshlrev_b32 v5, 4, v2")
    a("s_lshl_b32 s38, s39, 15")
    a("s_lshl_b32 s44, s32, 11")
    a("s_add_u32 s38, s38, s44")
    a("v_add_u32 v8, s38, v5")
    a("s_lshl_b32 s38, s39, 14")
    a("s_lshl_b32 s44, s33, 11")
    a("s_add_u32 s38, s38, s44")
    a("v_add_u32 v9, s38, v5")
    a("s_and_b32 s38, s39, 1")
    a("s_lshl_b32 s38, s38, 2")
    a("v_or_b32 v6, s38, v3")
    a("v_lshlrev_b32 v6, 1, v6")
    a("v_xor_b32 v6, v6, v4")
    a("v_lshlrev_b32 v6, 4, v6")
    a("s_lshl_b32 s38, s39, 3")
    a("v_add_u32 v7, s38, v3")
    a("s_lshl_b32 s44, s33, 8")
    a("v_lshl_add_u32 v10, v7, 11, v6")
    a("v_add_u32 v10, s44, v10")
    a("v_add_u32 v11, %d, v10" % (4 * 2048 - 1024))
    a("s_lshl_b32 s44, s32, 8")
    a("v_lshl_add_u32 v12, v7, 12, v6")
    a("v_add_u32 v12, s44, v12")
    a("v_add_u32 v13, %d, v12" % (4 * 4096 - 1024))
    a("s_lshl_b32 s44, s39, 11")
    a("s_mov_b32 s24, 0")
    a("s_mov_b32 s25, 0")
    a("s_mul_i32 s26, s48, %d" % (XS * 4 * 16384))
    a("s_mul_i32 s27, s48, %d" % (XS * 32 * 4096))
    def dma(slot, kd):
        b = slot * F_SLOT
        if kd == 0:
            return ["s_add_u32 m0, s44, %d" % b, "s_nop 0",
                    "buffer_load_dwordx4 v8, s[12:15], s24 offen lds",
                    "buffer_load_dwordx4 v8, s[12:15], s24 offen offset:1024 lds",
                    "s_add_u32 m0, s44, %d" % (b + 8192), "s_add_u32 s24, s24, 131072",
                    "buffer_load_dwordx4 v10, s[8:11], s25 offen lds",
                    "buffer_load_dwordx4 v11, s[8:11], s25 offen offset:1024 lds",
                    "s_add_u32 s25, s25, %d" % (32 * 2048)]
        return ["s_add_u32 m0, s44, %d" % b, "s_nop 0",
                "buffer_load_dwordx4 v9, s[20:23], s26 offen lds",
                "buffer_load_dwordx4 v9, s[20:23], s26 offen offset:1024 lds",
                "s_add_u32 m0, s44, %d" % (b + 8192), "s_add_u32 s26, s26, 65536",
                "buffer_load_dwordx4 v12, s[16:19], s27 offen lds",
                "buffer_load_dwordx4 v13, s[16:19], s27 offen offset:1024 lds",
                "s_add_u32 s27, s27, %d" % (32 * 4096)]
    a("s_cmp_eq_u32 s48, 0")
    a("s_cbranch_scc0 L_f_p1")
    emit_producer(a, 32 + XS, NS, 4, dma, None, "L_fp0", kind=lambda t: 0 if t < 32 else 1)
    stamp_store(a, 2)
    a("s_endpgm")
    a.label("L_f_p1")
    emit_producer(a, 112 - XS, NS, 4, dma, None, "L_fp1", kind=lambda t: 1)
    stamp_store(a, 2)
    a("s_endpgm")
    a.label("L_f_cons")
    ACA, ACB = 128, 192
    FR = [8, 40]; FT = [24, 56]
    NG = (NS + 3) // 4
    VR = [72, 72 + NG]
    VT = [72 + 2 * NG, 72 + 2 * NG + 4 * NG]
    VG = 72 + 10 * NG
    assert VG + 12 + 4 <= 128
    a("s_and_b32 s46, s31, 1")
    a("s_lshr_b32 s47, s31, 1")
    ws_srd(a, 24, 34, WS_G, 2 * MB)
    make_srd(a, 52, 42, 4096)
    make_srd(a, 56, 6, 4 * MB)
    ws_srd(a, 60, 34, WS_P, 16 * MB)
    a("s_lshl_b32 s38, s32, 7")
    a("s_lshl_b32 s39, s47, 6")
    a("s_add_u32 s38, s38, s39")
    a("v_add_u32 v5, s38, v4")
    a("v_lshlrev_b32 v6, 3, v5")
    a("v_lshlrev_b32 v7, 1, v5")
    for sj in range(4):
        a("buffer_load_dwordx2 v[%d:%d], v6, s[24:27], 0 offen offset:%d" % (VG + 2 * sj, VG + 2 * sj + 1, sj * 128))
    for sj in range(4):
        a("buffer_load_ushort v%d, v7, s[52:55], 0 offen offset:%d" % (VG + 8 + sj, sj * 32))
    a("v_lshlrev_b32 v1, 11, v5")
    a("v_lshlrev_b32 v5, 11, v3")
    a("v_lshl_add_u32 v5, v4, 4, v5")
    for kd, sreg in ((0, 47), (1, 46)):
        a("s_lshl_b32 s38, s%d, 10" % sreg)
        a("v_add_u32 v6, s38, v5")
        for gI in range(NG): a("v_add_u32 v%d, %d, v6" % (VR[kd] + gI, gI * 4 * F_SLOT))
    a("v_lshrrev_b32 v5, 2, v4")
    a("v_lshl_add_u32 v6, v3, 3, v5")
    a("v_and_b32 v7, 1, v3")
    a("v_lshl_add_u32 v5, v7, 2, v5")
    a("v_and_b32 v7, 3, v4")
    a("v_lshlrev_b32 v7, 3, v7")
    a("v_lshl_add_u32 v6, v6, 8, v7")
    a("v_add_u32 v6, 8192, v6")
    for kd, sreg in ((0, 46), (1, 47)):
        for n in range(4):
            a("s_lshl_b32 s38, s%d, 2" % sreg)
            a("s_add_u32 s38, s38, %d" % n)
            a("v_xor_b32 v7, s38, v5")
            a("v_lshl_add_u32 v7, v7, 5, v6")
            for gI in range(NG): a("v_add_u32 v%d, %d, v7" % (VT[kd] + 4 * gI + n, gI * 4 * F_SLOT))
    for r in range(128): a("v_mov_b32 v%d, 0" % (ACA + r))
    def reads(fs, slot, kd):
        gI, so = slot // 4, (slot % 4) * F_SLOT
        rr = lambda j: "ds_read_b128 v[%d:%d], v%d offset:%d" % (FR[fs] + 4 * j, FR[fs] + 4 * j + 3, VR[kd] + gI, so + j * 256)
        rt = lambda n: ["ds_read_b64_tr_b16 v[%d:%d], v%d offset:%d" % (FT[fs] + 4 * n + 2 * hh, FT[fs] + 4 * n + 2 * hh + 1,
                        VT[kd] + 4 * gI + n, so + hh * 1024) for hh in range(2)]
        L = []
        for j in range(4): L += [rr(j)] + rt(j)
        return L
    def mfmas(fs, kd):
        L = []
        for ii in range(4):
            for jj in range(4):
                c = (ACA if kd == 0 else ACB) + (ii * 4 + jj) * 4
                A = (FT if kd == 0 else FR)[fs] + 4 * ii
                B = (FR if kd == 0 else FT)[fs] + 4 * jj
                L.append("v_mfma_f32_16x16x32_bf16 v[%d:%d], v[%d:%d], v[%d:%d], v[%d:%d]" % (c, c + 3, A, A + 3, B, B + 3, c, c + 3))
        return L
    RSPAN = cfg.get("f_rspan", 12)
    def loop(T, kind, nm):
        a("s_barrier")
        stamp(a, 1)
        for x in reads(0, 0, kind(0)): a(x)
        keys = [(t % NS, t % 2, kind(t), kind(t + 1) if t + 1 < T else None) for t in range(T)]
        def fn(k):
            slot, fs, kd, kn = k
            a("s_waitcnt lgkmcnt(0)")
            if kn is None:
                for x in mfmas(fs, kd): a(x)
            else:
                a("s_barrier")
                for x in interleave(mfmas(fs, kd), reads(1 - fs, (slot + 1) % NS, kn), 0, RSPAN): a(x)
        emit_seq(a, keys, NS if NS % 2 == 0 else 2 * NS, fn, 30, nm)
    a("s_lshl_b32 s50, s49, 8")
    a("s_add_u32 s50, s50, 0x%x" % (WS_FLAG - WS_G))
    a("v_mov_b32 v5, 0")
    a("v_mov_b32 v6, 1")
    a("s_setprio 1")
    a("s_cmp_eq_u32 s48, 0")
    a("s_cbranch_scc0 L_f_c1")
    loop(32 + XS, lambda t: 0 if t < 32 else 1, "L_fc0")
    a("s_branch L_f_exch")
    a.label("L_f_c1")
    loop(112 - XS, lambda t: 1, "L_fc1")
    a.label("L_f_exch")
    stamp(a, 2)
    a("s_setprio 0")
    a("s_lshl_b32 s38, s31, 4")
    a("s_add_u32 s50, s50, s38")
    a("v_cmp_eq_u32 vcc, 0, v2")
    a("s_and_saveexec_b64 s[64:65], vcc")
    a("buffer_atomic_add v6, v5, s[24:27], s50 offen sc0")
    a("s_mov_b64 exec, s[64:65]")
    a("s_lshl_b32 s51, s49, 17")
    a("s_lshl_b32 s38, s31, 14")
    a("s_add_u32 s51, s51, s38")
    a("v_lshlrev_b32 v7, 4, v2")
    a("s_waitcnt vmcnt(0)")
    a("v_readfirstlane_b32 s38, v6")
    a("s_nop 3")
    a("s_cmp_eq_u32 s38, 0")
    a("s_cbranch_scc0 L_f_second")
    for q in range(16):
        if q % 4 == 0: a("s_add_u32 s39, s51, %d" % (q * 1024))
        a("buffer_store_dwordx4 v[%d:%d], v7, s[60:63], s39 offen offset:%d sc0 sc1" % (ACB + 4 * q, ACB + 4 * q + 3, (q % 4) * 1024))
    a("s_cmp_eq_u32 s48, 0")
    a("s_cbranch_scc0 L_f_pub_done")
    for q in range(16):
        if q % 4 == 0: a("s_add_u32 s39, s51, %d" % (65536 + q * 1024))
        a("buffer_store_dwordx4 v[%d:%d], v7, s[60:63], s39 offen offset:%d sc0 sc1" % (ACA + 4 * q, ACA + 4 * q + 3, (q % 4) * 1024))
    a.label("L_f_pub_done")
    a("v_mov_b32 v6, 0x100")
    a("s_waitcnt vmcnt(0)")
    a("v_cmp_eq_u32 vcc, 0, v2")
    a("s_and_saveexec_b64 s[64:65], vcc")
    a("buffer_atomic_add v6, v5, s[24:27], s50 offen")
    stamp_store(a, 2)
    a("s_endpgm")
    a.label("L_f_second")
    a.label("L_f_poll")
    a("buffer_load_dword v6, v5, s[24:27], s50 offen sc0 sc1")
    a("s_waitcnt vmcnt(0)")
    a("v_readfirstlane_b32 s38, v6")
    a("s_nop 3")
    a("s_and_b32 s38, s38, 0x100")
    a("s_cmp_lg_u32 s38, 0")
    a("s_cbranch_scc1 L_f_ready")
    a("s_sleep 1")
    a("s_branch L_f_poll")
    a.label("L_f_ready")
    for q in range(16):
        if q % 4 == 0: a("s_add_u32 s39, s51, %d" % (q * 1024))
        a("buffer_load_dwordx4 v[%d:%d], v7, s[60:63], s39 offen offset:%d sc0 sc1" % (8 + 4 * q, 8 + 4 * q + 3, (q % 4) * 1024))
    a("s_cmp_eq_u32 s48, 0")
    a("s_cbranch_scc1 L_f_noa")
    for q in range(16):
        if q % 4 == 0: a("s_add_u32 s39, s51, %d" % (65536 + q * 1024))
        a("buffer_load_dwordx4 v[%d:%d], v7, s[60:63], s39 offen offset:%d sc0 sc1" % (ACA + 4 * q, ACA + 4 * q + 3, (q % 4) * 1024))
    a("s_waitcnt vmcnt(0)")
    a.label("L_f_noa")
    a("s_mov_b32 s66, 0xffff0000")
    for sj in range(4): a("v_lshlrev_b32 v%d, 16, v%d" % (VG + 8 + sj, VG + 8 + sj))
    a("v_and_b32 v5, 1, v3")
    a("v_lshrrev_b32 v6, 1, v3")
    a("v_lshlrev_b32 v6, 4, v6")
    a("v_lshl_add_u32 v6, v5, 5, v6")
    a("v_add_u32 v1, v1, v6")
    a("s_lshl_b32 s38, s33, 8")
    a("s_lshl_b32 s39, s46, 7")
    a("s_add_u32 s67, s38, s39")
    X = VG + 12
    O = 72
    def comb(ii, jj, o, waitn):
        q = ii * 4 + jj
        ca, cb, pb = ACA + 4 * q, ACB + 4 * q, 8 + 4 * q
        G, OM, B2 = VG + 2 * jj, VG + 2 * jj + 1, VG + 8 + jj
        a("s_waitcnt vmcnt(%d)" % waitn) if waitn is not None else None
        for h in (0, 2): a("v_pk_add_f32 v[%d:%d], v[%d:%d], v[%d:%d]" % (cb + h, cb + h + 1, cb + h, cb + h + 1, pb + h, pb + h + 1))
        a("v_cvt_pk_bf16_f32 v%d, v%d, v%d" % (o, cb, cb + 1))
        a("v_cvt_pk_bf16_f32 v%d, v%d, v%d" % (o + 1, cb + 2, cb + 3))
        def unpack(dst):
            a("v_lshlrev_b32 v%d, 16, v%d" % (dst, o))
            a("v_and_b32 v%d, s66, v%d" % (dst + 1, o))
            a("v_lshlrev_b32 v%d, 16, v%d" % (dst + 2, o + 1))
            a("v_and_b32 v%d, s66, v%d" % (dst + 3, o + 1))
        def pack(src):
            a("v_cvt_pk_bf16_f32 v%d, v%d, v%d" % (o, src, src + 1))
            a("v_cvt_pk_bf16_f32 v%d, v%d, v%d" % (o + 1, src + 2, src + 3))
        unpack(cb)
        for e in range(4): a("v_add_f32 v%d, v%d, v%d" % (cb + e, cb + e, B2))
        pack(cb); unpack(cb)
        for e in range(4): a("v_mul_f32 v%d, v%d, v%d" % (cb + e, cb + e, OM))
        pack(cb); unpack(cb)
        pack(ca); unpack(ca)
        for e in range(4): a("v_mul_f32 v%d, v%d, v%d" % (ca + e, ca + e, G))
        pack(ca); unpack(ca)
        for h in (0, 2): a("v_pk_add_f32 v[%d:%d], v[%d:%d], v[%d:%d]" % (cb + h, cb + h + 1, cb + h, cb + h + 1, ca + h, ca + h + 1))
        pack(cb)
    a("s_waitcnt vmcnt(0)")
    n = 0
    for ip in range(2):
        for jj in range(4):
            o = O + 4 * (n % 2); n += 1
            comb(2 * ip, jj, o, None)
            comb(2 * ip + 1, jj, o + 2, None)
            a("s_nop 1")
            a("v_permlane16_swap_b32 v%d, v%d" % (o, o + 2))
            a("v_permlane16_swap_b32 v%d, v%d" % (o + 1, o + 3))
            a("s_add_u32 s38, s67, %d" % (jj * 16 * 2048))
            a("buffer_store_dwordx4 v[%d:%d], v1, s[56:59], s38 offen offset:%d" % (o, o + 3, ip * 64))
    stamp_store(a, 2)
    a.label("L_f_end")
    a("s_endpgm")
    return dict(name=name, grid=256, block=512, lds=NS * F_SLOT, vgpr=256, sgpr=102)
```

```python
from common import *

def gen_ln(a, cfg):
    name = "ln_kernel"
    kernel_header(a, name)
    a("s_cmp_ge_u32 s2, 256")
    a("s_cbranch_scc1 L_ln_end")
    stamp(a, 0); stamp(a, 1); stamp(a, 2)
    a("s_load_dwordx2 s[4:5], s[0:1], 0")
    a("s_load_dwordx2 s[6:7], s[0:1], 64")
    a("s_load_dwordx2 s[42:43], s[0:1], 8")
    a("s_load_dwordx2 s[44:45], s[0:1], 32")
    a("s_load_dwordx2 s[34:35], s[0:1], 88")
    a("v_lshrrev_b32 v1, 6, v0")
    a("v_and_b32 v2, 63, v0")
    a("v_lshlrev_b32 v3, 4, v2")
    a("v_readfirstlane_b32 s31, v1")
    a("s_lshl_b32 s3, s2, 3")
    a("s_add_u32 s30, s3, s31")
    a("s_lshl_b32 s28, s30, 11")
    a("v_and_b32 v4, 7, v2")
    a("v_lshrrev_b32 v5, 3, v2")
    a("s_lshl_b32 s29, s31, 4")
    a("v_add_u32 v5, s29, v5")
    a("v_add_u32 v4, s3, v4")
    a("v_lshlrev_b32 v6, 11, v4")
    a("v_lshl_add_u32 v6, v5, 4, v6")
    a("v_lshlrev_b32 v7, 15, v5")
    a("v_lshl_add_u32 v7, v4, 4, v7")
    a("s_waitcnt lgkmcnt(0)")
    make_srd(a, 8, 4, 4 * MB)
    make_srd(a, 12, 6, 2048)
    ws_srd(a, 16, 34, 0, 22 * MB)
    a("buffer_load_dwordx4 v[8:11], v3, s[8:11], s28 offen")
    a("buffer_load_dwordx4 v[12:15], v3, s[8:11], s28 offen offset:1024")
    a("buffer_load_dwordx4 v[16:19], v3, s[12:15], 0 offen")
    a("buffer_load_dwordx4 v[20:23], v3, s[12:15], 0 offen offset:1024")
    a("buffer_load_dwordx4 v[24:27], v6, s[8:11], 0 offen")
    a("buffer_load_dwordx4 v[28:31], v6, s[8:11], 0 offen offset:128")
    npf = 0
    if cfg.get("pf", 1):
        nq = cfg.get("ln_nq", 1)
        npf = 1
        a("s_mov_b32 s39, 0x%x" % (nq * 2 * MB))
        a("s_cmp_lt_u32 s31, 2")
        a("s_cselect_b32 s20, s44, s42")
        a("s_cselect_b32 s21, s45, s43")
        a("s_cselect_b32 s22, 0x%x, s39" % (4 * MB))
        a("s_and_b32 s21, s21, 0xffff")
        a("s_mov_b32 s23, 0x00020000")
        a("s_lshl_b32 s38, s2, 1")
        a("s_add_u32 s38, s38, s31")
        a("s_sub_u32 s39, s31, 2")
        a("s_lshl_b32 s39, s39, 8")
        a("s_add_u32 s39, s39, s2")
        a("s_cmp_lt_u32 s31, 2")
        a("s_cselect_b32 s38, s38, s39")
        a("s_lshl_b32 s38, s38, 13")
        a("v_lshlrev_b32 v74, 7, v2")
        a("buffer_load_dword v75, v74, s[20:23], s38 offen")
    a("s_mov_b32 s36, 0xffff0000")
    a("s_mov_b32 s37, 0x3f803f80")
    a("v_mov_b32 v64, 0")
    a("v_mov_b32 v65, 0")
    a("s_waitcnt vmcnt(%d)" % (4 + npf))
    for k in range(8):
        a("v_lshlrev_b32 v%d, 16, v%d" % (32 + 2 * k, 8 + k))
        a("v_and_b32 v%d, s36, v%d" % (33 + 2 * k, 8 + k))
    for k in range(8):
        a("v_dot2_f32_bf16 v64, v%d, s37, v64" % (8 + k))
    a("s_waitcnt vmcnt(%d)" % (2 + npf))
    for k in range(8):
        a("v_lshlrev_b32 v%d, 16, v%d" % (48 + 2 * k, 16 + k))
        a("v_and_b32 v%d, s36, v%d" % (49 + 2 * k, 16 + k))
    for k in range(8):
        a("v_pk_mul_f32 v[%d:%d], v[%d:%d], v[%d:%d]" % (48 + 2 * k, 49 + 2 * k, 48 + 2 * k, 49 + 2 * k, 32 + 2 * k, 33 + 2 * k))
    for k in range(8):
        a("v_cvt_pk_bf16_f32 v%d, v%d, v%d" % (16 + k, 48 + 2 * k, 49 + 2 * k))
    for k in range(8):
        a("v_dot2_f32_bf16 v65, v%d, s37, v65" % (16 + k))
    a("s_nop 2")
    wave_allreduce(a, [64, 65], "v_add_f32", [66, 67])
    a("s_waitcnt vmcnt(%d)" % npf)
    a("s_mov_b32 s38, 0x%x" % WS_XO)
    a("s_mov_b32 s39, 0x%x" % (WS_XO + 8 * 32768))
    a("buffer_store_dwordx4 v[24:27], v7, s[16:19], s38 offen")
    a("buffer_store_dwordx4 v[28:31], v7, s[16:19], s39 offen")
    a("v_mul_f32 v64, %s, v64" % f32hex(1.0 / 1024))
    a("v_sub_f32 v68, 0, v64")
    a("v_mov_b32 v69, v68")
    a("v_mov_b32 v70, 0")
    a("v_mov_b32 v71, 0")
    for k in range(8):
        a("v_pk_add_f32 v[%d:%d], v[%d:%d], v[68:69]" % (48 + 2 * k, 49 + 2 * k, 32 + 2 * k, 33 + 2 * k))
    for k in range(8):
        a("v_pk_fma_f32 v[70:71], v[%d:%d], v[%d:%d], v[70:71]" % (48 + 2 * k, 49 + 2 * k, 48 + 2 * k, 49 + 2 * k))
    a("v_add_f32 v70, v70, v71")
    wave_allreduce(a, [70], "v_add_f32", [66])
    a("v_cvt_pk_bf16_f32 v64, v64, v65")
    a("v_mul_f32 v70, %s, v70" % f32hex(1.0 / 1024))
    a("v_and_b32 v65, s36, v64")
    a("v_lshlrev_b32 v64, 16, v64")
    a("v_cvt_pk_bf16_f32 v70, v70, v70")
    a("v_mul_f32 v65, %s, v65" % f32hex(-1.4426950408889634))
    a("v_and_b32 v70, s36, v70")
    a("v_exp_f32 v65, v65")
    a("v_add_f32 v70, %s, v70" % f32hex(1e-5))
    a("v_sub_f32 v68, 0, v64")
    a("v_add_f32 v65, 1.0, v65")
    a("v_cvt_pk_bf16_f32 v70, v70, v70")
    a("v_rcp_f32 v65, v65")
    a("v_and_b32 v70, s36, v70")
    a("v_mov_b32 v69, v68")
    a("v_sqrt_f32 v70, v70")
    a("v_cvt_pk_bf16_f32 v65, v65, v65")
    a("v_and_b32 v72, s36, v65")
    a("v_cvt_pk_bf16_f32 v70, v70, v70")
    a("v_sub_f32 v73, 1.0, v72")
    a("v_and_b32 v70, s36, v70")
    a("v_cvt_pk_bf16_f32 v73, v73, v73")
    a("v_rcp_f32 v70, v70")
    a("v_and_b32 v73, s36, v73")
    for k in range(8):
        a("v_pk_add_f32 v[%d:%d], v[%d:%d], v[68:69]" % (48 + 2 * k, 49 + 2 * k, 32 + 2 * k, 33 + 2 * k))
    a("v_mov_b32 v71, v70")
    for k in range(8):
        a("v_cvt_pk_bf16_f32 v%d, v%d, v%d" % (8 + k, 48 + 2 * k, 49 + 2 * k))
    for k in range(8):
        a("v_lshlrev_b32 v%d, 16, v%d" % (48 + 2 * k, 8 + k))
        a("v_and_b32 v%d, s36, v%d" % (49 + 2 * k, 8 + k))
    for k in range(8):
        a("v_pk_mul_f32 v[%d:%d], v[%d:%d], v[70:71]" % (48 + 2 * k, 49 + 2 * k, 48 + 2 * k, 49 + 2 * k))
    for k in range(8):
        a("v_cvt_pk_bf16_f32 v%d, v%d, v%d" % (8 + k, 48 + 2 * k, 49 + 2 * k))
    a("s_mul_i32 s38, s31, 2112")
    a("v_add_u32 v4, s38, v3")
    a("ds_write_b128 v4, v[8:11]")
    a("ds_write_b128 v4, v[12:15] offset:1024")
    a("v_lshrrev_b32 v5, 4, v2")
    a("v_and_b32 v6, 15, v2")
    a("v_lshrrev_b32 v7, 2, v6")
    a("v_mul_u32_u24 v7, 2112, v7")
    a("v_lshl_add_u32 v7, v5, 5, v7")
    a("v_and_b32 v6, 3, v6")
    a("v_lshl_add_u32 v7, v6, 3, v7")
    a("s_lshl_b32 s38, s31, 8")
    a("v_add_u32 v7, s38, v7")
    a("s_lshl_b32 s38, s30, 3")
    a("s_add_u32 s38, s38, 0x%x" % WS_G)
    a("v_mov_b32 v5, 0")
    a("v_cmp_eq_u32 vcc, 0, v2")
    a("s_and_saveexec_b64 s[40:41], vcc")
    a("buffer_store_dwordx2 v[72:73], v5, s[16:19], s38 offen")
    a("s_mov_b64 exec, s[40:41]")
    a("s_waitcnt lgkmcnt(0)")
    a("s_barrier")
    for j in range(2):
        for hh in range(2):
            a("ds_read_b64_tr_b16 v[%d:%d], v7 offset:%d" % (8 + 4 * j + 2 * hh, 9 + 4 * j + 2 * hh, j * 128 + hh * 4 * 2112))
    a("s_lshl_b32 s38, s2, 14")
    a("s_lshl_b32 s39, s31, 11")
    a("s_add_u32 s38, s38, s39")
    a("s_waitcnt lgkmcnt(2)")
    a("buffer_store_dwordx4 v[8:11], v3, s[16:19], s38 offen")
    a("s_waitcnt lgkmcnt(0)")
    a("buffer_store_dwordx4 v[12:15], v3, s[16:19], s38 offen offset:1024")
    if STAMPS[0]:
        a("s_mov_b64 s[84:85], exec"); stamp_store(a, 0); a("s_mov_b64 exec, s[84:85]"); a("v_mov_b32 v5, 0")
    a("s_cmp_ge_u32 s2, 128")
    a("s_cbranch_scc1 L_ln_end")
    a("s_cmp_lg_u32 s31, 0")
    a("s_cbranch_scc1 L_ln_end")
    a("s_lshl_b32 s38, s2, 8")
    a("s_add_u32 s38, s38, 0x%x" % WS_FLAG)
    a("v_lshlrev_b32 v4, 2, v2")
    a("buffer_store_dword v5, v4, s[16:19], s38 offen")
    a.label("L_ln_end")
    a("s_endpgm")
    return dict(name=name, grid=256, block=512, lds=8 * 2112, vgpr=80, sgpr=102)
```

```python
from common import *

def emit_producer(a, T, NS, ND, dma, extra, name, ctr=30, kind=lambda t: 0, pf=None):
    pf = pf or {}
    q = []
    def issue(t): q.extend([t] * ND)
    def allow(t):
        last = max(i for i, x in enumerate(q) if x == t)
        return len(q) - 1 - last
    for x in flat(dma(0, kind(0))): a(x)
    for x in flat(dma(1, kind(1))): a(x)
    issue(0); issue(1)
    a("s_waitcnt vmcnt(%d)" % ND)
    a("s_barrier")
    stamp(a, 1)
    for s in range(2, NS):
        for x in flat(dma(s, kind(s))): a(x)
        issue(s)
    for g in pf.get(-1, []):
        for x in g: a(x)
        q.append('pf')
    if extra:
        for x in flat(extra(0)): a(x)
    keys = []
    for t in range(T - 1):
        n = allow(t + 1)
        assert n <= 63
        kd = kind(t + NS) if t + NS < T else None
        if kd is not None: issue(t + NS)
        p = tuple(tuple(g) for g in pf.get(t, []))
        q.extend(['pf'] * len(p))
        keys.append((t % NS, n, kd, p))
    def fn(k):
        slot, n, kd, p = k
        a("s_waitcnt vmcnt(%d)" % n)
        a("s_barrier")
        if kd is not None:
            for x in flat(dma(slot, kd)): a(x)
        for g in p:
            for x in g: a(x)
        if extra:
            for x in flat(extra((slot + 1) % NS)): a(x)
    emit_seq(a, keys, NS, fn, ctr, name)
    stamp(a, 2)

W1_NS = 7
W1_SLOT = 8192 + 14336
def w1_path(a, cfg):
    NS, SLOT, T = W1_NS, W1_SLOT, 64
    a("s_lshl_b32 s36, s32, 11")
    a("s_mul_i32 s37, s33, 448")
    a("s_cmp_lt_u32 s31, 4")
    a("s_cbranch_scc1 L_w1_cons")
    a("s_sub_u32 s39, s31, 4")
    a("s_lshl_b32 s38, s39, 14")
    a("s_add_u32 s38, s38, s36")
    a("v_lshlrev_b32 v8, 4, v2")
    a("v_add_u32 v8, s38, v8")
    M, sh = magic_div(28, 256)
    a("s_and_b32 s40, s39, 1")
    a("s_lshl_b32 s40, s40, 1")
    a("s_mul_i32 s41, s39, %d" % (8 * 7168))
    a("s_add_u32 s41, s41, s37")
    for n in range(4):
        a("v_add_u32 v5, %d, v2" % (64 * n))
        a("v_mul_u32_u24 v6, %d, v5" % M)
        a("v_lshrrev_b32 v6, %d, v6" % sh)
        a("v_mul_u32_u24 v7, 28, v6")
        a("v_sub_u32 v5, v5, v7")
        a("v_xor_b32 v5, s40, v5")
        a("v_lshlrev_b32 v5, 4, v5")
        a("v_mul_u32_u24 v6, 7168, v6")
        a("v_add3_u32 v5, v5, v6, s41")
        a("v_subrev_u32 v%d, %d, v5" % (9 + n, n * 1024))
    a("s_lshl_b32 s44, s39, 11")
    a("s_mul_i32 s45, s39, 3584")
    a("s_add_u32 s45, s45, 8192")
    a("s_mov_b32 s28, 0")
    a("s_mov_b32 s29, 0")
    def dma(slot, kd):
        L = ["s_add_u32 m0, s44, %d" % (slot * SLOT), "s_nop 0",
             "buffer_load_dwordx4 v8, s[8:11], s28 offen lds",
             "buffer_load_dwordx4 v8, s[8:11], s28 offen offset:1024 lds",
             "s_add_u32 m0, s45, %d" % (slot * SLOT), "s_add_u32 s28, s28, 65536",
             "buffer_load_dwordx4 v9, s[12:15], s29 offen lds",
             "buffer_load_dwordx4 v10, s[12:15], s29 offen offset:1024 lds",
             "buffer_load_dwordx4 v11, s[12:15], s29 offen offset:2048 lds",
             "s_mov_b64 exec, 0xffffffff",
             "buffer_load_dwordx4 v12, s[12:15], s29 offen offset:3072 lds",
             "s_mov_b64 exec, -1",
             "s_add_u32 s29, s29, %d" % (32 * 7168)]
        return L
    emit_producer(a, T, NS, 6, dma, None, "L_w1p")
    stamp_store(a, 1)
    a("s_endpgm")
    a.label("L_w1_cons")
    ACC = 128; FA = [8, 52]; FB = [36, 80]; VH = 96; VW = 100; VB = 240
    a("s_and_b32 s46, s31, 1")
    a("s_lshr_b32 s47, s31, 1")
    a("s_mul_i32 s38, s47, 224")
    a("s_add_u32 s38, s38, s37")
    a("v_lshlrev_b32 v5, 3, v3")
    a("v_add_u32 v5, s38, v5")
    for fi in range(7):
        a("buffer_load_dwordx2 v[%d:%d], v5, s[20:23], 0 offen offset:%d" % (VB + 2 * fi, VB + 2 * fi + 1, fi * 32))
    GR = 2
    NG = (NS + GR - 1) // GR
    a("s_lshl_b32 s38, s46, 10")
    a("v_lshlrev_b32 v5, 11, v3")
    a("v_lshl_add_u32 v5, v4, 4, v5")
    a("v_add_u32 v5, s38, v5")
    for gI in range(NG): a("v_add_u32 v%d, %d, v5" % (VH + gI, gI * GR * SLOT))
    a("v_lshrrev_b32 v5, 2, v4")
    a("v_lshl_add_u32 v6, v3, 3, v5")
    a("v_and_b32 v7, 1, v3")
    a("v_and_b32 v1, 3, v4")
    a("v_lshlrev_b32 v1, 3, v1")
    a("v_mul_u32_u24 v117, 448, v6")
    a("v_add_u32 v117, v117, v1")
    a("s_mul_i32 s38, s47, 224")
    a("s_add_u32 s38, s38, 8192")
    a("v_add_u32 v117, s38, v117")
    a("v_lshlrev_b32 v118, 5, v7")
    a("v_sub_u32 v119, 0, v118")
    a("s_cmp_eq_u32 s47, 0")
    a("s_cselect_b64 vcc, -1, 0")
    a("v_cndmask_b32 v120, v119, v118, vcc")
    a("v_cndmask_b32 v121, v118, v119, vcc")
    for gI in range(NG):
        a("v_add_u32 v122, %d, v117" % (gI * GR * SLOT))
        a("v_add_u32 v%d, v122, v120" % (VW + 2 * gI))
        a("v_add_u32 v%d, v122, v121" % (VW + 2 * gI + 1))
    assert VW + 2 * NG <= 117
    for r in range(0, 112, 2): a("v_pk_mov_b32 v[%d:%d], 0, 0" % (ACC + r, ACC + r + 1)) if False else (a("v_mov_b32 v%d, 0" % (ACC + r)), a("v_mov_b32 v%d, 0" % (ACC + r + 1)))
    def reads(fs, slot):
        gI, so = slot // GR, (slot % GR) * SLOT
        rb = lambda j: "ds_read_b128 v[%d:%d], v%d offset:%d" % (FB[fs] + 4 * j, FB[fs] + 4 * j + 3, VH + gI, so + j * 256)
        ra = lambda n: ["ds_read_b64_tr_b16 v[%d:%d], v%d offset:%d" % (FA[fs] + 4 * n + 2 * hh, FA[fs] + 4 * n + 2 * hh + 1,
                        VW + 2 * gI + (n & 1), so + 4 * hh * 448 + n * 32) for hh in range(2)]
        L = [rb(0)] + ra(0) + [rb(1), rb(2), rb(3)]
        for n in range(1, 7): L += ra(n)
        return L
    def mfmas(fs):
        L = []
        for fi in range(7):
            for dj in range(4):
                c = ACC + (fi * 4 + dj) * 4
                L.append("v_mfma_f32_16x16x32_bf16 v[%d:%d], v[%d:%d], v[%d:%d], v[%d:%d]" % (
                    c, c + 3, FA[fs] + 4 * fi, FA[fs] + 4 * fi + 3, FB[fs] + 4 * dj, FB[fs] + 4 * dj + 3, c, c + 3))
        return L
    a("s_setprio 1")
    a("s_barrier")
    stamp(a, 1)
    for x in reads(0, 0): a(x)
    keys = [(t % NS, t % 2, t == T - 1) for t in range(T)]
    def fn(k):
        slot, fs, last = k
        a("s_waitcnt lgkmcnt(0)")
        if last:
            for x in mfmas(fs): a(x)
        else:
            a("s_barrier")
            for x in interleave(mfmas(fs), reads(1 - fs, (slot + 1) % NS), 0, 20): a(x)
    emit_seq(a, keys, 2 * NS, fn, 30, "L_w1c")
    stamp(a, 2)
    a("s_waitcnt vmcnt(0)")
    a("s_mov_b32 s50, %s" % f32hex(-2.302208198))
    a("s_mov_b32 s51, %s" % f32hex(-0.1029432397))
    a("s_mov_b32 s52, 0xffff0000")
    a("s_mul_i32 s38, s33, 28")
    a("s_mul_i32 s39, s47, 14")
    a("s_add_u32 s38, s38, s39")
    a("s_lshl_b32 s38, s38, 14")
    a("s_add_u32 s38, s38, s36")
    a("s_lshl_b32 s39, s46, 10")
    a("s_add_u32 s53, s38, s39")
    a("v_and_b32 v5, 1, v3")
    a("v_lshrrev_b32 v6, 1, v3")
    a("v_lshlrev_b32 v7, 4, v4")
    a("v_lshl_add_u32 v7, v6, 14, v7")
    a("v_lshl_add_u32 v1, v5, 15, v7")
    a("v_lshl_add_u32 v7, v5, 8, v7")
    a("v_mov_b32 v30, s50")
    a("v_mov_b32 v31, s50")
    a("v_mov_b32 v28, s51")
    a("v_mov_b32 v29, s51")
    a("v_mov_b32 v26, 1.0")
    a("v_mov_b32 v27, 1.0")
    def gelu_tile(fi, dj, o, B):
        c = ACC + (fi * 4 + dj) * 4
        X, Y = 12, 16
        a("v_cvt_pk_bf16_f32 v%d, v%d, v%d" % (o, c, c + 1))
        a("v_cvt_pk_bf16_f32 v%d, v%d, v%d" % (o + 1, c + 2, c + 3))
        a("v_lshlrev_b32 v%d, 16, v%d" % (X, o))
        a("v_and_b32 v%d, s52, v%d" % (X + 1, o))
        a("v_lshlrev_b32 v%d, 16, v%d" % (X + 2, o + 1))
        a("v_and_b32 v%d, s52, v%d" % (X + 3, o + 1))
        a("v_pk_add_f32 v[%d:%d], v[%d:%d], v[%d:%d]" % (X, X + 1, X, X + 1, B, B + 1))
        a("v_pk_add_f32 v[%d:%d], v[%d:%d], v[%d:%d]" % (X + 2, X + 3, X + 2, X + 3, B + 2, B + 3))
        a("v_cvt_pk_bf16_f32 v%d, v%d, v%d" % (o, X, X + 1))
        a("v_cvt_pk_bf16_f32 v%d, v%d, v%d" % (o + 1, X + 2, X + 3))
        a("v_lshlrev_b32 v%d, 16, v%d" % (X, o))
        a("v_and_b32 v%d, s52, v%d" % (X + 1, o))
        a("v_lshlrev_b32 v%d, 16, v%d" % (X + 2, o + 1))
        a("v_and_b32 v%d, s52, v%d" % (X + 3, o + 1))
        for h in (0, 2): a("v_pk_mul_f32 v[%d:%d], v[%d:%d], v[%d:%d]" % (Y + h, Y + h + 1, X + h, X + h + 1, X + h, X + h + 1))
        for h in (0, 2): a("v_pk_fma_f32 v[%d:%d], v[%d:%d], v[28:29], v[30:31]" % (Y + h, Y + h + 1, Y + h, Y + h + 1))
        for h in (0, 2): a("v_pk_mul_f32 v[%d:%d], v[%d:%d], v[%d:%d]" % (Y + h, Y + h + 1, Y + h, Y + h + 1, X + h, X + h + 1))
        for e in range(4): a("v_exp_f32 v%d, v%d" % (Y + e, Y + e))
        a("s_nop 0")
        for h in (0, 2): a("v_pk_add_f32 v[%d:%d], v[%d:%d], v[26:27]" % (Y + h, Y + h + 1, Y + h, Y + h + 1))
        for e in range(4): a("v_rcp_f32 v%d, v%d" % (Y + e, Y + e))
        a("s_nop 0")
        for h in (0, 2): a("v_pk_mul_f32 v[%d:%d], v[%d:%d], v[%d:%d]" % (Y + h, Y + h + 1, Y + h, Y + h + 1, X + h, X + h + 1))
        a("v_cvt_pk_bf16_f32 v%d, v%d, v%d" % (o, Y, Y + 1))
        a("v_cvt_pk_bf16_f32 v%d, v%d, v%d" % (o + 1, Y + 2, Y + 3))
    def bias_unpack(fi, B):
        a("v_lshlrev_b32 v%d, 16, v%d" % (B, VB + 2 * fi))
        a("v_and_b32 v%d, s52, v%d" % (B + 1, VB + 2 * fi))
        a("v_lshlrev_b32 v%d, 16, v%d" % (B + 2, VB + 2 * fi + 1))
        a("v_and_b32 v%d, s52, v%d" % (B + 3, VB + 2 * fi + 1))
    nst = 0
    for fp in range(3):
        bias_unpack(2 * fp, 20); bias_unpack(2 * fp + 1, 32)
        for dj in range(4):
            o = 40 + 4 * (nst % 4); nst += 1
            gelu_tile(2 * fp, dj, o, 20)
            gelu_tile(2 * fp + 1, dj, o + 2, 32)
            a("s_nop 1")
            a("v_permlane16_swap_b32 v%d, v%d" % (o, o + 2))
            a("v_permlane16_swap_b32 v%d, v%d" % (o + 1, o + 3))
            a("s_add_u32 s38, s53, %d" % (fp * 4 * 16384))
            a("buffer_store_dwordx4 v[%d:%d], v1, s[16:19], s38 offen offset:%d" % (o, o + 3, dj * 256))
    bias_unpack(6, 20)
    for dp in range(2):
        o = 40 + 4 * (nst % 4); nst += 1
        gelu_tile(6, 2 * dp, o, 20)
        gelu_tile(6, 2 * dp + 1, o + 2, 20)
        a("s_nop 1")
        a("v_permlane16_swap_b32 v%d, v%d" % (o, o + 2))
        a("v_permlane16_swap_b32 v%d, v%d" % (o + 1, o + 3))
        a("s_add_u32 s38, s53, %d" % (12 * 16384))
        a("buffer_store_dwordx4 v[%d:%d], v7, s[16:19], s38 offen offset:%d" % (o, o + 3, dp * 512))
    stamp_store(a, 1)
    a("s_endpgm")
```

```python
from common import *
from k_main1 import emit_producer

Q_NS = 5
Q_XB, Q_HB, Q_WB = 0, 16384, 17408
Q_SLOT = 17408 + 12288
AQ, AK, AV, AH = 0, 16384, 16384 + 17408, 16384 + 2 * 17408
PSQ, PSK = 128 * 64, 136 * 64

def insert_waits(seq, carried):
    out = []
    pend = list(carried)
    for kind, text, defs, uses in seq:
        if kind == 'mf':
            need = -1
            for idx, d in enumerate(pend):
                if d & uses: need = idx
            if need >= 0:
                n = len(pend) - 1 - need
                out.append("s_waitcnt lgkmcnt(%d)" % min(n, 15))
                pend = pend[need + 1:] if n <= 15 else pend[len(pend) - 15:]
            out.append(text)
        elif kind == 'rd':
            out.append(text); pend.append(defs)
        elif kind == 'w0':
            out.append("s_waitcnt lgkmcnt(0)"); pend = []
        else:
            out.append(text)
    return out, pend

def qkv_path(a, cfg):
    NS, SLOT, T = Q_NS, Q_SLOT, 32
    a("s_lshl_b32 s36, s32, 12")
    a("s_lshl_b32 s37, s33, 7")
    a("v_lshrrev_b32 v5, 2, v4")
    a("v_lshl_add_u32 v6, v3, 3, v5")
    a("v_mul_u32_u24 v6, 384, v6")
    a("v_and_b32 v7, 3, v4")
    a("v_lshl_add_u32 v6, v7, 3, v6")
    a("v_lshrrev_b32 v5, 3, v4")
    a("v_and_b32 v7, 1, v3")
    a("v_lshl_or_b32 v5, v7, 1, v5")
    a("s_cmp_lt_u32 s31, 4")
    a("s_cbranch_scc1 L_q_cons")
    a("s_sub_u32 s39, s31, 4")
    a("s_lshr_b32 s46, s39, 1")
    a("s_and_b32 s47, s39, 1")
    a("s_lshl_b32 s38, s46, 1")
    for n in range(2):
        a("s_add_u32 s40, s38, %d" % n)
        a("v_xor_b32 v7, s40, v5")
        a("v_lshl_add_u32 v7, v7, 5, v6")
        a("s_lshl_b32 s40, s47, 7")
        a("s_add_u32 s40, s40, %d" % (Q_WB + 128))
        a("v_add_u32 v%d, s40, v7" % (20 + n))
        a("v_add_u32 v%d, %d, v%d" % (23 + n, 2 * SLOT, 20 + n))
        a("v_add_u32 v%d, %d, v%d" % (26 + n, 4 * SLOT, 20 + n))
    a("v_lshlrev_b32 v7, 8, v3")
    a("v_lshl_add_u32 v7, v4, 4, v7")
    a("v_add_u32 v22, %d, v7" % Q_HB)
    a("v_add_u32 v25, %d, v7" % (Q_HB + 2 * SLOT))
    a("v_add_u32 v28, %d, v7" % (Q_HB + 4 * SLOT))
    for r in range(8): a("v_mov_b32 v%d, 0" % (48 + r))
    a("s_lshl_b32 s38, s39, 15")
    a("s_add_u32 s38, s38, s36")
    a("v_lshlrev_b32 v8, 4, v2")
    a("v_add_u32 v8, s38, v8")
    a("v_lshlrev_b32 v9, 2, v2")
    a("s_sub_u32 s38, s38, 256")
    a("s_max_i32 s38, s38, 0")
    a("v_add_u32 v9, s38, v9")
    M, sh = magic_div(24, 256)
    a("s_mul_i32 s41, s39, %d" % (8 * 6144))
    a("s_add_u32 s41, s41, s37")
    a("s_and_b32 s40, s39, 1")
    a("s_lshl_b32 s40, s40, 1")
    for n in range(3):
        a("v_add_u32 v13, %d, v2" % (64 * n))
        a("v_mul_u32_u24 v14, %d, v13" % M)
        a("v_lshrrev_b32 v14, %d, v14" % sh)
        a("v_mul_u32_u24 v15, 24, v14")
        a("v_sub_u32 v13, v13, v15")
        a("v_lshrrev_b32 v15, 1, v14")
        a("v_and_b32 v15, 1, v15")
        a("v_or_b32 v15, s40, v15")
        a("v_lshlrev_b32 v15, 1, v15")
        a("v_xor_b32 v13, v13, v15")
        a("v_lshrrev_b32 v15, 3, v13")
        a("v_and_b32 v13, 7, v13")
        a("v_lshlrev_b32 v13, 4, v13")
        a("v_lshl_add_u32 v13, v15, 11, v13")
        a("v_mul_u32_u24 v14, 6144, v14")
        a("v_add3_u32 v13, v13, v14, s41")
        a("v_subrev_u32 v%d, %d, v13" % (10 + n, n * 1024))
    a("s_lshl_b32 s44, s39, 12")
    a("s_mul_i32 s45, s39, 3072")
    a("s_add_u32 s45, s45, %d" % Q_WB)
    a("s_lshl_b32 s43, s39, 8")
    a("s_add_u32 s43, s43, %d" % Q_HB)
    a("s_mov_b32 s28, 0")
    a("s_mov_b32 s29, 0")
    def dma(slot, kd):
        b = slot * SLOT
        return ["s_add_u32 m0, s44, %d" % b, "s_nop 0",
                "buffer_load_dwordx4 v8, s[8:11], s28 offen lds",
                "buffer_load_dwordx4 v8, s[8:11], s28 offen offset:1024 lds",
                "buffer_load_dwordx4 v8, s[8:11], s28 offen offset:2048 lds",
                "buffer_load_dwordx4 v8, s[8:11], s28 offen offset:3072 lds",
                "s_add_u32 m0, s43, %d" % b, "s_nop 0",
                "buffer_load_dword v9, s[8:11], s28 offen lds",
                "s_add_u32 m0, s45, %d" % b, "s_add_u32 s28, s28, 131072",
                "buffer_load_dwordx4 v10, s[12:15], s29 offen lds",
                "buffer_load_dwordx4 v11, s[12:15], s29 offen offset:1024 lds",
                "buffer_load_dwordx4 v12, s[12:15], s29 offen offset:2048 lds",
                "s_add_u32 s29, s29, %d" % (32 * 6144)]
    def extra(slot):
        gI, so = slot // 2, (slot % 2) * SLOT
        vb = 20 + 3 * gI
        L = ["ds_read_b128 v[32:35], v%d offset:%d" % (vb + 2, so)]
        for n in range(2):
            for hh in range(2):
                L.append("ds_read_b64_tr_b16 v[%d:%d], v%d offset:%d" % (36 + 4 * n + 2 * hh, 37 + 4 * n + 2 * hh, vb + n, so + hh * 4 * 384))
        L.append("s_waitcnt lgkmcnt(0)")
        for n in range(2):
            L.append("v_mfma_f32_16x16x32_bf16 v[%d:%d], v[%d:%d], v[32:35], v[%d:%d]" % (48 + 4 * n, 51 + 4 * n, 36 + 4 * n, 39 + 4 * n, 48 + 4 * n, 51 + 4 * n))
        return L
    pf = {}
    if cfg.get("pf", 1):
        a("s_lshl_b32 s38, s32, 4")
        a("s_add_u32 s38, s38, s33")
        a("s_lshl_b32 s38, s38, 2")
        a("s_add_u32 s38, s38, s39")
        a("s_lshl_b32 s38, s38, 13")
        a("v_lshlrev_b32 v16, 7, v2")
        a("v_add_u32 v16, s38, v16")
        sched = cfg.get("pf_sched", [-1, 3, 6, 10, 13, 16, 19, 21])
        items = [(20, 1), (20, 2), (20, 3), (24, 0), (24, 1), (24, 2), (24, 3), (48, 0)]
        for t, (srd, rnd) in zip(sched, items):
            pf.setdefault(t, []).append(["s_mov_b32 s38, 0x%x" % (rnd * 4 * MB), "buffer_load_dword v17, v16, s[%d:%d], s38 offen" % (srd, srd + 3)])
    emit_producer(a, T, NS, 8, dma, extra, "L_qp", pf=pf)
    a("v_and_b32 v5, 1, v4")
    a("v_mul_u32_u24 v5, %d, v5" % PSK)
    a("v_lshrrev_b32 v6, 1, v4")
    a("v_lshl_add_u32 v5, v6, 6, v5")
    a("v_and_b32 v7, 1, v3")
    a("v_lshl_add_u32 v5, v7, 3, v5")
    a("s_mul_i32 s38, s46, %d" % AH)
    a("s_mul_i32 s40, s47, %d" % (AV - AK))
    a("s_add_u32 s38, s38, s40")
    a("s_add_u32 s38, s38, %d" % AK)
    a("v_add_u32 v5, s38, v5")
    a("v_lshrrev_b32 v6, 2, v4")
    a("v_lshrrev_b32 v7, 1, v3")
    a("v_xor_b32 v6, v6, v7")
    a("v_lshl_add_u32 v13, v6, 4, v5")
    a("v_xor_b32 v6, 2, v6")
    a("v_lshl_add_u32 v14, v6, 4, v5")
    for n in range(2):
        a("v_cvt_pk_bf16_f32 v%d, v%d, v%d" % (32 + 2 * n, 48 + 4 * n, 49 + 4 * n))
        a("v_cvt_pk_bf16_f32 v%d, v%d, v%d" % (33 + 2 * n, 50 + 4 * n, 51 + 4 * n))
    a("s_barrier")
    a("ds_write_b64 v13, v[32:33]")
    a("ds_write_b64 v14, v[34:35]")
    a("s_branch L_q_attn")
    a.label("L_q_cons")
    ACC = 64; FX = 8; FW = 40
    VX, VW0 = 1, 2
    a("s_and_b32 s46, s31, 1")
    a("s_lshr_b32 s47, s31, 1")
    a("s_lshl_b32 s38, s47, 1")
    a("v_xor_b32 v7, s38, v5")
    a("v_lshl_add_u32 v7, v7, 5, v6")
    a("s_add_u32 s38, s38, 1")
    a("v_xor_b32 v5, s38, v5")
    a("v_lshl_add_u32 v5, v5, 5, v6")
    a("v_add_u32 v6, %d, v7" % Q_WB)
    a("v_add_u32 v7, %d, v5" % Q_WB)
    a("v_lshlrev_b32 v5, 12, v3")
    a("v_lshl_add_u32 v5, v4, 4, v5")
    a("s_lshl_b32 s38, s46, 11")
    a("v_add_u32 v5, s38, v5")
    VXa, VWa = 5, 6
    for r in range(192): a("v_mov_b32 v%d, 0" % (ACC + r))
    def rs(b, n): return set(range(b, b + n))
    def rdX(s): return ('rd', "ds_read_b128 v[%d:%d], v%d offset:%d" % (FX + 4 * s, FX + 4 * s + 3, VXa, s * 256), rs(FX + 4 * s, 4), None)
    def rdW(n): return [('rd', "ds_read_b64_tr_b16 v[%d:%d], v%d offset:%d" % (FW + 4 * n + 2 * hh, FW + 4 * n + 2 * hh + 1, VWa + (n & 1),
                          (n >> 1) * 128 + hh * 4 * 384), rs(FW + 4 * n + 2 * hh, 2), None) for hh in range(2)]
    def mf(n, s):
        c = ACC + (n * 8 + s) * 4
        return ('mf', "v_mfma_f32_16x16x32_bf16 v[%d:%d], v[%d:%d], v[%d:%d], v[%d:%d]" % (
            c, c + 3, FW + 4 * n, FW + 4 * n + 3, FX + 4 * s, FX + 4 * s + 3, c, c + 3), None, rs(FW + 4 * n, 4) | rs(FX + 4 * s, 4))
    order = []
    for s in range(8): order += [(0, s), (1, s)]
    for n in (2, 3):
        for s in range(8): order.append((n, s))
    for s in range(8): order += [(4, s), (5, s)]
    BARPOS = 17
    def substep(slot, first, last):
        nxt = (slot + 1) % NS
        delta = (nxt - slot) * SLOT
        fill = {i: [] for i in range(48)}
        if not first:
            w45 = rdW(4) + rdW(5)
            for j, x in enumerate(w45): fill[4 + 2 * j].append(x)
        if not last:
            fill[BARPOS - 3].append(('x', "v_add_u32 v%d, %d, v%d" % (VWa, delta & 0xffffffff, VWa), None, None))
            fill[BARPOS - 2].append(('x', "v_add_u32 v%d, %d, v%d" % (VWa + 1, delta & 0xffffffff, VWa + 1), None, None))
            fill[BARPOS - 1].append(('x', "v_add_u32 v%d, %d, v%d" % (VXa, delta & 0xffffffff, VXa), None, None))
            fill[BARPOS].append(('w0', None, None, None))
            fill[BARPOS].append(('x', "s_barrier", None, None))
            for j, x in enumerate(rdW(0) + rdW(1)): fill[BARPOS + 1 + j].append(x)
            for j, x in enumerate(rdW(2)): fill[24 + j].append(x)
            for j, x in enumerate(rdW(3)): fill[32 + 2 * j].append(x)
            for s in range(8): fill[32 + 2 * s + 1].append(rdX(s))
        seq = []
        for i, (n, s) in enumerate(order):
            seq.append(mf(n, s)); seq += fill[i]
        return seq
    a("s_setprio 1")
    a("s_barrier")
    stamp(a, 1)
    pro = rdW(0) + rdW(1) + rdW(2) + rdW(3) + [rdX(s) for s in range(8)] + rdW(4) + rdW(5)
    out, pend = insert_waits(pro + substep(0, True, False), [])
    for x in out: a(x)
    steady_in = pend
    o2, pend2 = insert_waits(substep(1, False, False), steady_in)
    assert pend2 == steady_in
    keys = [(t % NS, t == T - 1) for t in range(1, T)]
    def fn(k):
        slot, last = k
        o, _ = insert_waits(substep(slot, False, last), steady_in)
        for x in o: a(x)
    emit_seq(a, keys, NS, fn, 30, "L_qc")
    stamp(a, 2)
    a("s_setprio 0")
    a("v_and_b32 v2, 63, v0")
    a("v_lshrrev_b32 v3, 4, v2")
    a("v_and_b32 v4, 15, v2")
    a("v_lshrrev_b32 v6, 1, v4")
    a("v_lshlrev_b32 v5, 6, v6")
    a("v_and_b32 v7, 1, v3")
    a("v_lshl_add_u32 v5, v7, 3, v5")
    a("s_mul_i32 s38, s47, %d" % AH)
    a("s_lshl_b32 s40, s46, 12")
    a("s_add_u32 s38, s38, s40")
    a("v_add_u32 v5, s38, v5")
    a("v_lshrrev_b32 v6, 2, v4")
    a("v_lshrrev_b32 v7, 1, v3")
    a("v_xor_b32 v6, v6, v7")
    a("v_lshl_add_u32 v8, v6, 4, v5")
    a("v_xor_b32 v6, 2, v6")
    a("v_lshl_add_u32 v9, v6, 4, v5")
    a("v_and_b32 v7, 1, v4")
    a("v_mul_u32_u24 v6, %d, v7" % PSQ)
    a("v_mul_u32_u24 v7, %d, v7" % PSK)
    a("v_add_u32 v10, v8, v6")
    a("v_add_u32 v11, v9, v6")
    a("v_add_u32 v12, v8, v7")
    a("v_add_u32 v13, v9, v7")
    a("s_barrier")
    cnt = 0
    for n in range(6):
        for s in range(8):
            c = ACC + (n * 8 + s) * 4
            o = 16 + 2 * (cnt % 8); cnt += 1
            a("v_cvt_pk_bf16_f32 v%d, v%d, v%d" % (o, c, c + 1))
            a("v_cvt_pk_bf16_f32 v%d, v%d, v%d" % (o + 1, c + 2, c + 3))
            part = n >> 1
            base = [AQ, AK + 512, AV + 512][part]
            a("ds_write_b64 v%d, v[%d:%d] offset:%d" % ((10 if part == 0 else 12) + (n & 1), o, o + 1, base + s * 512))
    a.label("L_q_attn")
    a("s_lshr_b32 s46, s31, 2")
    a("s_and_b32 s47, s31, 3")
    a("v_lshrrev_b32 v5, 1, v4")
    a("v_and_b32 v5, 3, v5")
    a("v_xor_b32 v5, v5, v3")
    a("v_lshlrev_b32 v5, 4, v5")
    a("v_lshl_add_u32 v5, v4, 6, v5")
    a("s_mul_i32 s38, s46, %d" % AH)
    a("s_lshl_b32 s40, s47, 11")
    a("s_add_u32 s38, s38, s40")
    a("v_add_u32 v5, s38, v5")
    a("v_lshrrev_b32 v6, 2, v4")
    a("v_lshl_add_u32 v6, v3, 2, v6")
    a("v_lshrrev_b32 v7, 1, v6")
    a("v_and_b32 v7, 3, v7")
    a("v_lshrrev_b32 v8, 1, v4")
    a("v_and_b32 v8, 1, v8")
    a("v_xor_b32 v7, v7, v8")
    a("v_lshlrev_b32 v6, 6, v6")
    a("v_and_b32 v8, 1, v4")
    a("v_lshl_add_u32 v6, v8, 3, v6")
    a("v_add_u32 v6, s38, v6")
    a("v_lshl_add_u32 v8, v7, 4, v6")
    a("v_xor_b32 v7, 2, v7")
    a("v_lshl_add_u32 v9, v7, 4, v6")
    a("v_lshlrev_b32 v6, 2, v3")
    a("v_sub_u32 v6, v4, v6")
    for tau in range(2):
        for r in range(4):
            a("v_add_u32 v7, %d, v6" % ((16 * (1 - tau) - r) & 0xffffffff))
            a("v_cmp_gt_u32 s[%d:%d], 8, v7" % (56 + 2 * (4 * tau + r), 57 + 2 * (4 * tau + r)))
    a("s_or_b32 s38, s32, s47")
    a("s_cmp_eq_u32 s38, 0")
    a("s_cselect_b64 s[72:73], 0, -1")
    for r in range(4):
        a("s_and_b64 s[%d:%d], s[%d:%d], s[72:73]" % (74 + 2 * r, 75 + 2 * r, 56 + 2 * r, 57 + 2 * r))
    a("s_mov_b32 s52, 0xffff0000")
    a("s_mov_b32 s53, %s" % f32hex(32 ** -0.5))
    a("s_mov_b32 s54, %s" % f32hex(1.4426950408889634))
    a("v_mov_b32 v10, %s" % f32hex(-1e9))
    a("v_and_b32 v6, 1, v3")
    a("v_lshrrev_b32 v7, 1, v3")
    a("v_lshl_add_u32 v6, v6, 1, v7")
    a("v_lshlrev_b32 v6, 15, v6")
    a("v_lshl_add_u32 v11, v4, 5, v6")
    a("s_lshl_b32 s38, s33, 1")
    a("s_add_u32 s38, s38, s46")
    a("s_lshl_b32 s38, s38, 17")
    a("s_add_u32 s38, s38, s36")
    a("s_lshl_b32 s40, s47, 10")
    a("s_add_u32 s55, s38, s40")
    a("s_waitcnt lgkmcnt(0)")
    a("s_barrier")
    blocks = [(p, b) for p in range(2) for b in range(2)]
    RB = lambda k: 16 + 48 * k
    for k, (p, b) in enumerate(blocks):
        R = RB(k)
        a("ds_read_b128 v[%d:%d], v5 offset:%d" % (R, R + 3, AQ + p * PSQ + b * 1024))
        for tau in range(2):
            off = AK + p * PSK + (16 * b - 8 + 16 * tau) * 64
            a("ds_read_b128 v[%d:%d], v5 offset:%d" % (R + 4 + 4 * tau, R + 7 + 4 * tau, off))
    for k, (p, b) in enumerate(blocks):
        R = RB(k)
        for dt in range(2):
            for tau in range(2):
                off = AV + p * PSK + (16 * b - 8 + 16 * tau) * 64
                a("ds_read_b64_tr_b16 v[%d:%d], v%d offset:%d" % (R + 12 + 4 * dt + 2 * tau, R + 13 + 4 * dt + 2 * tau, 8 + dt, off))
    for k in range(4):
        R = RB(k)
        a("s_waitcnt lgkmcnt(%d)" % min(15, 16 + 3 * (3 - k)))
        if k == 0: a("s_waitcnt lgkmcnt(15)")
        for tau in range(2):
            a("v_mfma_f32_16x16x32_bf16 v[%d:%d], v[%d:%d], v[%d:%d], 0" % (R + 20 + 4 * tau, R + 23 + 4 * tau, R + 4 + 4 * tau, R + 7 + 4 * tau, R, R + 3))
    a("s_nop 7")
    def forall(fn):
        for k in range(4): fn(k, RB(k))
    def f1(k, R):
        for h in range(4): a("v_cvt_pk_bf16_f32 v%d, v%d, v%d" % (R + h, R + 20 + 2 * h, R + 21 + 2 * h))
    forall(f1)
    def f2(k, R):
        for h in range(4):
            a("v_lshlrev_b32 v%d, 16, v%d" % (R + 20 + 2 * h, R + h))
            a("v_and_b32 v%d, s52, v%d" % (R + 21 + 2 * h, R + h))
        for e in range(8): a("v_mul_f32 v%d, s53, v%d" % (R + 20 + e, R + 20 + e))
        for h in range(4): a("v_cvt_pk_bf16_f32 v%d, v%d, v%d" % (R + h, R + 20 + 2 * h, R + 21 + 2 * h))
        for h in range(4):
            a("v_lshlrev_b32 v%d, 16, v%d" % (R + 20 + 2 * h, R + h))
            a("v_and_b32 v%d, s52, v%d" % (R + 21 + 2 * h, R + h))
        for e in range(8):
            sm = (74 + 2 * e) if (e < 4 and blocks[k][1] == 0) else (56 + 2 * e)
            a("v_cndmask_b32 v%d, v10, v%d, s[%d:%d]" % (R + 20 + e, R + 20 + e, sm, sm + 1))
        a("v_max3_f32 v%d, v%d, v%d, v%d" % (R + 28, R + 20, R + 21, R + 22))
        a("v_max3_f32 v%d, v%d, v%d, v%d" % (R + 29, R + 23, R + 24, R + 25))
        a("v_max3_f32 v%d, v%d, v%d, v%d" % (R + 28, R + 28, R + 26, R + 27))
        a("v_max_f32 v%d, v%d, v%d" % (R + 28, R + 28, R + 29))
    forall(f2)
    def xred(op):
        for sw in ("v_permlane16_swap_b32", "v_permlane32_swap_b32"):
            forall(lambda k, R: a("v_mov_b32 v%d, v%d" % (R + 29, R + 28)))
            a("s_nop 0")
            forall(lambda k, R: a("%s v%d, v%d" % (sw, R + 28, R + 29)))
            forall(lambda k, R: a("%s v%d, v%d, v%d" % (op, R + 28, R + 28, R + 29)))
    xred("v_max_f32")
    def f3(k, R):
        for e in range(8): a("v_sub_f32 v%d, v%d, v%d" % (R + 20 + e, R + 20 + e, R + 28))
        for e in range(8): a("v_mul_f32 v%d, s54, v%d" % (R + 20 + e, R + 20 + e))
        for e in range(8): a("v_exp_f32 v%d, v%d" % (R + 20 + e, R + 20 + e))
        a("s_nop 0")
        a("v_add_f32 v%d, v%d, v%d" % (R + 28, R + 20, R + 21))
        a("v_add_f32 v%d, v%d, v%d" % (R + 29, R + 22, R + 23))
        a("v_add_f32 v%d, v%d, v%d" % (R + 28, R + 28, R + 24))
        a("v_add_f32 v%d, v%d, v%d" % (R + 29, R + 29, R + 25))
        a("v_add_f32 v%d, v%d, v%d" % (R + 28, R + 28, R + 26))
        a("v_add_f32 v%d, v%d, v%d" % (R + 29, R + 29, R + 27))
        a("v_add_f32 v%d, v%d, v%d" % (R + 28, R + 28, R + 29))
    forall(f3)
    xred("v_add_f32")
    forall(lambda k, R: a("v_rcp_f32 v%d, v%d" % (R + 28, R + 28)))
    def f4(k, R):
        for e in range(8): a("v_mul_f32 v%d, v%d, v%d" % (R + 20 + e, R + 20 + e, R + 28))
        for h in range(4): a("v_cvt_pk_bf16_f32 v%d, v%d, v%d" % (R + h, R + 20 + 2 * h, R + 21 + 2 * h))
    forall(f4)
    a("s_waitcnt lgkmcnt(0)")
    a("s_nop 0")
    def f5(k, R):
        for dt in range(2):
            a("v_mfma_f32_16x16x32_bf16 v[%d:%d], v[%d:%d], v[%d:%d], 0" % (R + 36 + 4 * dt, R + 39 + 4 * dt, R + 12 + 4 * dt, R + 15 + 4 * dt, R, R + 3))
    forall(f5)
    a("s_nop 7")
    def f6(k, R):
        for h in range(4): a("v_cvt_pk_bf16_f32 v%d, v%d, v%d" % (R + 4 + h, R + 36 + 2 * h, R + 37 + 2 * h))
    forall(f6)
    def f7(k, R):
        a("v_permlane16_swap_b32 v%d, v%d" % (R + 4, R + 6))
        a("v_permlane16_swap_b32 v%d, v%d" % (R + 5, R + 7))
    forall(f7)
    def f8(k, R):
        p, b = blocks[k]
        a("buffer_store_dwordx4 v[%d:%d], v11, s[16:19], s55 offen offset:%d" % (R + 4, R + 7, p * 16 + b * 512))
    forall(f8)
    stamp_store(a, 1)
    a("s_endpgm")
```

```python
import sys, json
from common import *
from k_ln import gen_ln
from k_main1 import w1_path, W1_NS, W1_SLOT
from k_qkv import qkv_path, Q_NS, Q_SLOT
from k_final import gen_final

def gen_main1(a, cfg):
    name = "main1_kernel"
    kernel_header(a, name)
    a("s_cmp_ge_u32 s2, 256")
    a("s_cbranch_scc1 L_m1_end")
    stamp(a, 0)
    a("s_load_dwordx4 s[40:43], s[0:1], 8")
    a("s_load_dwordx2 s[44:45], s[0:1], 48")
    a("s_load_dwordx4 s[4:7], s[0:1], 32")
    a("s_load_dwordx2 s[34:35], s[0:1], 88")
    a("v_lshrrev_b32 v1, 6, v0")
    a("v_and_b32 v2, 63, v0")
    a("v_lshrrev_b32 v3, 4, v2")
    a("v_and_b32 v4, 15, v2")
    a("v_readfirstlane_b32 s31, v1")
    a("s_and_b32 s3, s2, 7")
    a("s_lshr_b32 s30, s2, 3")
    a("s_and_b32 s32, s3, 1")
    a("s_lshl_b32 s32, s32, 2")
    a("s_and_b32 s38, s30, 3")
    a("s_add_u32 s32, s32, s38")
    a("s_lshr_b32 s33, s3, 1")
    a("s_lshl_b32 s33, s33, 2")
    a("s_lshr_b32 s38, s30, 2")
    a("s_and_b32 s38, s38, 3")
    a("s_add_u32 s33, s33, s38")
    a("s_cmp_ge_u32 s30, 16")
    a("s_waitcnt lgkmcnt(0)")
    a("s_cbranch_scc1 L_m1_qkv")
    ws_srd(a, 8, 34, WS_HT, 4 * MB)
    make_srd(a, 12, 4, 2048 * 7168)
    ws_srd(a, 16, 34, WS_U, 448 * 16384)
    make_srd(a, 20, 6, 7168)
    w1_path(a, cfg)
    a.label("L_m1_qkv")
    ws_srd(a, 8, 34, WS_XO, 4 * MB)
    make_srd(a, 12, 40, 1024 * 6144)
    ws_srd(a, 16, 34, WS_O, 4 * MB)
    make_srd(a, 20, 4, 2048 * 7168)
    make_srd(a, 24, 44, 3584 * 4096)
    make_srd(a, 48, 42, 2 * MB)
    qkv_path(a, cfg)
    a.label("L_m1_end")
    a("s_endpgm")
    return dict(name=name, grid=256, block=512, lds=max(W1_NS * W1_SLOT, Q_NS * Q_SLOT), vgpr=256, sgpr=102)

HEADER = open("gated_mix__sliding_local_dilated__mixer_token_mlp__prompt.s.ref").read().split("; Override launch")[0]

def build(cfg):
    body = Asm()
    STAMPS[0] = bool(cfg.get("stamps"))
    ks = [gen_ln(body, cfg), gen_main1(body, cfg), gen_final(body, cfg)]
    out = HEADER
    for k in ks:
        out += "; @launch kernel=%s grid=(%d,1,1) block=(%d,1,1) lds=%d\n" % (k["name"], k["grid"], k["block"], k["lds"])
    out += '.amdgcn_target "amdgcn-amd-amdhsa--gfx950"\n.text\n'
    out += body.text()
    out += '.section .rodata,"a"\n'
    for k in ks:
        out += kernel_desc(k["name"], k["vgpr"], k["sgpr"])
    return out

if __name__ == "__main__":
    cfg = json.loads(sys.argv[2]) if len(sys.argv) > 2 else {}
    open(sys.argv[1], "w").write(build(cfg))
```
